```python
import torch

def _softmax(x, axis=-1):
    return torch.softmax(x, dim=axis)
def _gelu(x):
    return torch.nn.functional.gelu(x, approximate="tanh")
def _silu(x):
    return torch.nn.functional.silu(x)
def _sigmoid(x):
    return torch.sigmoid(x)
def _layernorm(x, axis=-1, eps=1e-5):
    m = x.mean(dim=axis, keepdim=True)
    v = x.var(dim=axis, keepdim=True, unbiased=False)
    return (x - m) / torch.sqrt(v + eps)
def _scatter_add(tgt, idx, src, axis=0):
    return tgt.clone().index_add_(axis, idx, src)
def _segment_sum(src, seg, n):
    out = torch.zeros((n,) + src.shape[1:], dtype=src.dtype)
    return out.index_add_(0, seg, src)
def _pad(x, pw):
    flat = tuple(v for pair in reversed(pw) for v in pair)
    return torch.nn.functional.pad(x, flat)

kernel_name = 'sequential_preLN__sliding_block_cached__glu_gated_glu__decode'

def setup_inputs():

    _w = (lambda a: (lambda t: t.to(torch.bfloat16) if t.is_floating_point() else t)(torch.as_tensor(a)))
    def _A_setup():
        B, Sq, D = 4, 1, 512
        Hq, Hkv, Sk, Dh = 32, 8, 8192, 128
        assert Hq % Hkv == 0, (Hq, Hkv)
        return {
            "x": _w((lambda *s: torch.randn(*s, dtype=torch.bfloat16) * 0.05)(B, Sq, D)),
            "k_cache": _w((lambda *s: torch.randn(*s, dtype=torch.bfloat16) * 3.2)(B, Hkv, Sk, Dh)),
            "v_cache": _w((lambda *s: torch.randn(*s, dtype=torch.bfloat16) * 0.4)(B, Hkv, Sk, Dh)),
            "wq": _w((lambda *s: torch.randn(*s, dtype=torch.bfloat16) * 3.2)(D, Hq * Dh) * (D ** -0.5)),
            "wo": _w((lambda *s: torch.randn(*s, dtype=torch.bfloat16) * 0.4)(Hq * Dh, D) * ((Hq * Dh) ** -0.5)),
        }
    _A_in = _A_setup()

    def _B_setup():
        B, S, D, F = 4, 1, 512, 1792
        return {
            "x": _w((lambda *s: torch.randn(*s, dtype=torch.bfloat16) * 0.05)(B, S, D)),
            "w_gate": _w((lambda *s: torch.randn(*s, dtype=torch.bfloat16) * 0.1)(D, F)),
            "w_up": _w((lambda *s: torch.randn(*s, dtype=torch.bfloat16) * 0.05)(D, F)),
            "w_down": _w((lambda *s: torch.randn(*s, dtype=torch.bfloat16) * 0.05)(F, D)),
        }
    _B_in = _B_setup()

    return {
        "A_x": _A_in["x"],
        "A_k_cache": _A_in["k_cache"],
        "A_v_cache": _A_in["v_cache"],
        "A_wq": _A_in["wq"],
        "A_wo": _A_in["wo"],
        "B_x": _B_in["x"],
        "B_w_gate": _B_in["w_gate"],
        "B_w_up": _B_in["w_up"],
        "B_w_down": _B_in["w_down"],
    }

def reference(A_x, A_k_cache, A_v_cache, A_wq, A_wo, B_x, B_w_gate, B_w_up, B_w_down):
    def _A_ref(x, k_cache, v_cache, wq, wo):
        B, Sq, D = x.shape
        Hq, Dh = 32, 128
        Hkv, Sk = k_cache.shape[1], k_cache.shape[2]
        W = min(4096, max(256, Sk // 4))
        rep = Hq // Hkv
        q = (lambda x, *d: x.permute(*d))((x @ wq).reshape(B, Sq, Hq, Dh), 0, 2, 1, 3)
        k = (lambda x, n, axis: torch.repeat_interleave(x, n, dim=axis))(k_cache[:, :, Sk - W:, :], rep, axis=1)
        v = (lambda x, n, axis: torch.repeat_interleave(x, n, dim=axis))(v_cache[:, :, Sk - W:, :], rep, axis=1)
        scores = torch.einsum("bhqd,bhkd->bhqk", q, k) * (Dh ** -0.5)
        p = _softmax(scores, axis=-1)
        o = torch.einsum("bhqk,bhkd->bhqd", p, v)
        return (lambda x, *d: x.permute(*d))(o, 0, 2, 1, 3).reshape(B, Sq, Hq * Dh) @ wo

    def _B_ref(x, w_gate, w_up, w_down):
        g = torch.einsum("bsd,df->bsf", x, w_gate)
        u = torch.einsum("bsd,df->bsf", x, w_up)
        h = _sigmoid(g) * u
        return torch.einsum("bsf,fd->bsd", h, w_down)

    x = A_x
    h = x + _A_ref(_layernorm(x, axis=-1), A_k_cache, A_v_cache, A_wq, A_wo)
    h2 = h + _B_ref(_layernorm(h, axis=-1), B_w_gate, B_w_up, B_w_down)
    return h2
```

```python
import re

TRANS = ("v_exp_", "v_log_", "v_rcp_", "v_rsq_", "v_sqrt_", "v_sin_", "v_cos_")

def split_ops(s):
    ops, cur, depth = [], "", 0
    for ch in s:
        if ch == "[": depth += 1
        if ch == "]": depth -= 1
        if ch == "," and depth == 0:
            ops.append(cur.strip()); cur = ""
        else:
            cur += ch
    if cur.strip(): ops.append(cur.strip())
    return ops

def regs_of(op):
    tok = op.split()[0] if op.split() else ""
    tok = tok.lstrip("-")
    m = re.match(r"^(?:abs\()?\|?([vsa])(\d+)\|?\)?$", tok)
    if m: return {(m.group(1), int(m.group(2)))}
    m = re.match(r"^([vsa])\[(\d+):(\d+)\]$", tok)
    if m: return {(m.group(1), i) for i in range(int(m.group(2)), int(m.group(3)) + 1)}
    if tok in ("vcc", "vcc_lo", "vcc_hi"): return {("s", "vcc")}
    if tok in ("exec", "exec_lo", "exec_hi"): return {("s", "exec")}
    if tok == "m0": return {("s", "m0")}
    return set()

class Asm:
    def __init__(self):
        self.lines = []
        self.pos = 0
        self.valu_w = {}
        self.trans_w = {}
        self.valu_sw = {}
        self.mfma_d = {}
        self.mfma_c = {}
        self.store_d = {}
        self.m0_w = -100
        self.auto = True
        self.nlabel = 0

    def raw(self, s):
        self.lines.append(s)

    def label(self, name):
        self.lines.append(f"{name}:")

    def newlabel(self, base="L"):
        self.nlabel += 1
        return f"{base}_{self.nlabel}"

    def comment(self, s):
        self.lines.append(f"  ; {s}")

    def nop(self, n):
        while n > 0:
            k = min(n, 16)
            self.lines.append(f"  s_nop {k-1}")
            self.pos += k
            n -= k

    def fence(self):
        self.nop(0)

    def __call__(self, text):
        for t in text.split("\n"):
            t = t.strip()
            if t: self.ins(t)

    def ins(self, text):
        code = text.split(";")[0].strip()
        if not code:
            self.lines.append("  " + text); return
        parts = code.split(None, 1)
        mn = parts[0]
        ops = split_ops(parts[1]) if len(parts) > 1 else []
        if mn == "s_nop":
            self.lines.append("  " + text); self.pos += int(ops[0], 0) + 1; return
        R = [regs_of(o) for o in ops]
        need = 0
        def req(prev, n):
            nonlocal need
            if prev is None: return
            d = self.pos - prev - 1
            if n - d > need: need = n - d
        is_mfma = mn.startswith("v_mfma")
        is_valu = mn.startswith("v_") and not is_mfma
        is_ds = mn.startswith("ds_")
        is_vmem = mn.startswith(("buffer_", "global_", "flat_"))
        is_lds_dma = is_vmem and re.search(r"\blds\b", code) is not None
        dst, src = set(), set()
        if is_mfma:
            dst = R[0]; a, b, c = R[1], R[2], R[3]
            src = a | b | c
            for r in src: req(self.valu_w.get(r), 2)
            for r in a | b:
                if r in self.mfma_d: req(self.mfma_d[r][0], 8)
            for r in c:
                if r in self.mfma_d:
                    if self.mfma_d[r][1] != frozenset(c): req(self.mfma_d[r][0], 6)
            for r in dst - c:
                if r in self.mfma_d: req(self.mfma_d[r][0], 8)
        elif is_valu:
            nd = 1
            if "_co_" in mn or mn.startswith(("v_div_scale", "v_mad_u64", "v_mad_i64")): nd = 2
            if "permlane" in mn and "swap" in mn:
                dst = R[0] | R[1]; src = R[0] | R[1]
            else:
                for i in range(nd): dst |= R[i]
                for i in range(nd, len(R)): src |= R[i]
                if mn.startswith(("v_fmac", "v_pk_fmac", "v_dot2c", "v_writelane")) or "dpp" in code or "d16" in mn or "sdwa" in code:
                    src |= R[0]
            if mn.startswith("v_cndmask") and len(R) == 3: src |= {("s", "vcc")}
            isdpp = "_dpp" in mn or re.search(r"(quad_perm|row_|wave_)", code) is not None
            istrans = mn.startswith(TRANS)
            for r in src:
                if r[0] == "v":
                    if isdpp or "permlane" in mn: req(self.valu_w.get(r), 2)
                    if mn.startswith(("v_readfirstlane", "v_readlane")): req(self.valu_w.get(r), 1)
                    if not istrans: req(self.trans_w.get(r), 1)
                    if r in self.mfma_d: req(self.mfma_d[r][0], 8)
                else:
                    req(self.valu_sw.get(r), 4 if mn.startswith(("v_readlane", "v_writelane")) else 2)
            for r in dst:
                if r[0] == "v":
                    if r in self.mfma_d: req(self.mfma_d[r][0], 8)
                    req(self.mfma_c.get(r), 3)
                    req(self.store_d.get(r), 2)
        elif is_ds or is_vmem:
            isload = ("read" in mn or "load" in mn or "permute" in mn or "swizzle" in mn or "_rtn" in mn) and not is_lds_dma
            if isload:
                dst = R[0]
                for i in range(1, len(R)): src |= R[i]
            else:
                for x in R: src |= x
            for r in src | dst:
                if r[0] == "v":
                    if r in self.mfma_d: req(self.mfma_d[r][0], 8)
                    if r in src: req(self.trans_w.get(r), 1)
                elif is_vmem:
                    req(self.valu_sw.get(r), 5)
            for r in dst: req(self.store_d.get(r), 1)
            if is_lds_dma: req(self.m0_w, 1)
        else:
            if R: dst = R[0]
        if need > 0 and self.auto:
            self.nop(need)
        self.lines.append("  " + text)
        p = self.pos
        if is_mfma:
            for r in dst:
                self.mfma_d[r] = (p, frozenset(dst)); self.valu_w.pop(r, None); self.trans_w.pop(r, None)
            for r in R[3]: self.mfma_c[r] = p
        elif is_valu:
            for r in dst:
                if r[0] == "v":
                    self.valu_w[r] = p; self.mfma_d.pop(r, None)
                    if mn.startswith(TRANS): self.trans_w[r] = p
                    else: self.trans_w.pop(r, None)
                else:
                    self.valu_sw[r] = p
        elif is_vmem:
            if "store" in mn and ("x3" in mn or "x4" in mn):
                for r in R[0]: self.store_d[r] = p
        elif not is_ds:
            if ("s", "m0") in dst: self.m0_w = p
            if not mn.startswith(("s_cmp", "s_cbranch", "s_branch", "s_waitcnt", "s_barrier", "s_setprio", "s_sleep", "s_endpgm", "s_bitcmp")):
                for r in dst: self.valu_sw.pop(r, None)
        self.pos += 1

    def text(self):
        return "\n".join(self.lines) + "\n"
```

```python
import sys
from asmlib import Asm

KNAME = "sequential_preLN__sliding_block_cached__glu_gated_glu__decode_kernel"

GF = 0x3000
QA = 0x10000
GL = 0x60000
BS_O = 0x6000
HR_O = 0x7000
CR = 0x100000
DR = 0x200000
DRS = 7168
STAMPS = 0x800000
QFLAG = 0
ACNT = 4
KCNT = 8
MAXA = 64
LACC = 256
QL = 2048
CACC = 4096
WL = 8192
KL = 40960
STAT = 64
XN = 2048
QP = 8192
GACC = 12288
CSUM = 16384
GATE = 40960
DOWN = 106496
LDS_BYTES = 139264

SPIN = 1 << 16
LOG2E = 0x3fb8aa3b
SCALE = 0x3db504f3
EPS = 0x3727c5ac

def gen(stamps=False, opts=None):
    o = dict(trigger="q", prefetch=True)
    if opts: o.update(opts)
    A = Asm()
    EXIT = "L_endstamp" if stamps else "L_exit"
    def stamp(i):
        if stamps: A(f"s_memrealtime s[{64+2*i}:{65+2*i}]")
    def end():
        if stamps: A("s_branch L_endstamp")
        else: A("s_endpgm")
    def srd(d, p, nbytes):
        A(f"s_mov_b64 s[{d}:{d+1}], s[{p}:{p+1}]")
        A(f"s_mov_b32 s{d+2}, {nbytes:#x}")
        A(f"s_mov_b32 s{d+3}, 0x20000")
    P_X, P_K, P_V, P_WQ, P_WO, P_WG, P_WU, P_WD, P_OUT, P_DBG, P_WS = 32, 34, 36, 38, 40, 44, 46, 48, 50, 52, 54
    def spin_head(lbl, out):
        A("s_mov_b32 s30, 0")
        A.label(lbl)
        A("s_add_u32 s30, s30, 1")
        A(f"s_cmp_gt_u32 s30, {SPIN}")
        A(f"s_cbranch_scc1 {out}")
    def max_tree(dst, regs, op="v_max3_u32", op2="v_max_u32"):
        regs = list(regs)
        first = True
        while regs:
            if first:
                if len(regs) >= 3:
                    A(f"{op} v{dst}, v{regs[0]}, v{regs[1]}, v{regs[2]}"); regs = regs[3:]
                elif len(regs) == 2:
                    A(f"{op2} v{dst}, v{regs[0]}, v{regs[1]}"); regs = []
                else:
                    A(f"v_mov_b32 v{dst}, v{regs[0]}"); regs = []
                first = False
            elif len(regs) >= 2:
                A(f"{op} v{dst}, v{dst}, v{regs[0]}, v{regs[1]}"); regs = regs[2:]
            else:
                A(f"{op2} v{dst}, v{dst}, v{regs[0]}"); regs = []
    def load_tag(vr):
        A(f"v_readfirstlane_b32 s24, v{vr}")
        A("s_and_b32 s24, s24, -16")
        A("s_add_u32 s24, s24, 16")
    def lstore(ins):
        l1, l2 = A.newlabel("L_ls"), A.newlabel("L_ls")
        A("s_cmp_lg_u32 s26, 2")
        A(f"s_cbranch_scc1 {l1}")
        A(ins)
        A(f"s_branch {l2}")
        A.label(l1)
        A(ins + " sc1")
        A.label(l2)
    def rowsum(r):
        for k in (8, 4, 2, 1):
            A(f"v_add_f32_dpp v{r}, v{r}, v{r} row_ror:{k} row_mask:0xf bank_mask:0xf")
    def dbg_hello():
        srd(56, P_DBG, 256)
        A("s_getreg_b32 s25, hwreg(HW_REG_XCC_ID, 0, 4)")
        A("s_add_u32 s25, s25, 1")
        A("v_mov_b32 v9, s25")
        A("s_lshl_b32 s27, s4, 5")
        A("s_add_u32 s27, s27, s5")
        A("s_mov_b64 exec, 1")
        A("buffer_store_byte v9, v3, s[56:59], s27 offen sc1")
        A("s_mov_b64 exec, -1")

    hdr = open("sequential_preLN__sliding_block_cached__glu_gated_glu__decode.s.ref").read().split("\n")
    for l in hdr:
        if l.startswith(";") and "@launch" not in l and "Override" not in l and "grid=ceil" not in l: A.raw(l)
        elif not l.startswith(";"): break
    A.raw(f"; @launch grid=(256,1,1) block=(1024,1,1) lds={LDS_BYTES}")
    A.raw('.amdgcn_target "amdgcn-amd-amdhsa--gfx950"')
    A.raw(f".text\n.globl {KNAME}\n.p2align 8\n.type {KNAME},@function\n{KNAME}:")
    A("s_cmp_ge_u32 s2, 256")
    A("s_cbranch_scc1 L_exit")
    A("s_load_dwordx16 s[32:47], s[0:1], 0")
    A("s_load_dwordx8 s[48:55], s[0:1], 64")
    stamp(0)
    A("v_lshrrev_b32 v1, 6, v0")
    A("v_mov_b32 v3, 0")
    A("v_readfirstlane_b32 s3, v1")
    A("v_and_b32 v0, 63, v0")
    A("v_mov_b32 v4, 0")
    A("v_mov_b32 v5, 0")
    A("ds_write_b96 v3, v[4:6]".replace("v[4:6]", "v[4:6]") if False else "ds_write_b64 v3, v[4:5]")
    A("ds_write_b32 v3, v4 offset:8")
    A("s_and_b32 s4, s2, 7")
    A("s_lshr_b32 s5, s2, 3")
    A("v_and_b32 v1, 15, v0")
    A("v_lshrrev_b32 v2, 4, v0")
    A("s_mul_i32 s6, s5, 43")
    A("s_lshr_b32 s6, s6, 8")
    A("s_mul_i32 s7, s6, 6")
    A("s_sub_u32 s7, s5, s7")
    A("s_mul_i32 s28, s7, 11")
    A("s_cmp_eq_u32 s7, 5")
    A("s_cselect_b32 s28, 54, s28")
    A("s_cmp_ge_u32 s7, 4")
    A("s_cselect_b32 s29, 10, 11")
    A("s_lshl_b32 s27, s6, 3")
    A("s_add_u32 s27, s27, s4")
    A("s_lshl_b32 s27, s27, 8")
    A("s_add_u32 s28, s28, s27")
    A("s_cmp_ge_u32 s3, 5")
    A("s_cselect_b32 s27, 5, 1")
    A("s_sub_u32 s27, s3, s27")
    A("s_add_u32 s28, s28, s27")
    A("s_add_u32 s28, s28, 192")
    A("s_lshl_b32 s28, s28, 13")
    A("s_lshl_b32 s31, s27, 13")
    A(f"s_add_u32 s31, s31, {KL}")
    A("s_mov_b32 s10, 0x10000000")
    A("s_mov_b32 s11, 0x20000")
    A("s_mov_b32 s14, 0x4000000")
    A("s_mov_b32 s15, 0x20000")
    A("v_xor_b32 v4, v1, v2")
    A("v_lshlrev_b32 v4, 4, v4")
    A("v_lshl_add_u32 v4, v2, 8, v4")
    A("v_xor_b32 v5, 64, v4")
    A("v_xor_b32 v6, 0x80, v4")
    A("v_xor_b32 v7, 0xc0, v4")
    A("v_lshlrev_b32 v8, 4, v1")
    A("v_lshl_add_u32 v8, v2, 10, v8")
    if stamps:
        for i in range(66, 96, 2): A(f"s_mov_b64 s[{i}:{i+1}], 0")
    A("s_mov_b32 s22, s31")
    A("s_mov_b32 s23, s28")
    A("s_waitcnt lgkmcnt(0)")
    A("s_barrier")
    A(f"s_mov_b64 s[8:9], s[{P_WS}:{P_WS+1}]")
    stamp(1)
    A("s_cmp_ge_u32 s5, 24")
    A("s_cbranch_scc1 L_nonatt")
    A("s_cmp_ge_u32 s3, 5")
    A("s_cbranch_scc1 L_vwave")
    A("s_cmp_eq_u32 s3, 0")
    A("s_cbranch_scc1 L_w0")
    A("s_setprio 2")
    A(f"s_mov_b64 s[12:13], s[{P_K}:{P_K+1}]")
    A.label("L_a_kloop")
    for h in range(2):
        A("s_mov_b32 m0, s22")
        A(f"s_add_u32 s22, s22, {4096 if h == 0 else 28672}")
        for j in range(4):
            A(f"buffer_load_dwordx4 v{4+j}, s[12:15], s23 offen offset:{j*1024} nt lds")
        A(f"s_add_u32 s23, s23, {4096 if h == 0 else 28672}")
    A("s_add_u32 s27, s27, 4")
    A("s_cmp_lt_u32 s27, s29")
    A("s_cbranch_scc1 L_a_kloop")
    A("s_branch L_a_kdone")
    A.label("L_vwave")
    A("s_setprio 1")
    A("s_cmp_ge_u32 s27, s29")
    A(f"s_cbranch_scc1 {EXIT}")
    A(f"s_mov_b64 s[12:13], s[{P_V}:{P_V+1}]")
    A("s_add_u32 s27, s28, 4096")
    VV = 12
    for t in range(8):
        A(f"buffer_load_dwordx4 v[{VV+4*t}:{VV+4*t+3}], v8, s[12:15], {'s28' if t < 4 else 's27'} offen offset:{(t&3)*256} nt")
    A("s_branch L_v_go")
    A.label("L_w0")
    A("s_setprio 3")
    A("buffer_load_dword v6, v3, s[8:11], 0 offen sc1")
    dbg_hello()
    A("s_branch L_w0_go")
    A.label("L_nonatt")
    A("s_sub_u32 s21, s5, 24")
    A("s_cmp_gt_u32 s3, 3")
    A("s_cbranch_scc1 L_na_other")
    A("s_setprio 3")
    srd(16, P_X, 0x1000)
    srd(12, P_WQ, 0x400000)
    A("s_lshl_b32 s27, s3, 8")
    A("v_lshl_add_u32 v4, v1, 4, s27")
    A("v_lshl_add_u32 v4, v2, 10, v4")
    A("buffer_load_dwordx4 v[8:11], v4, s[16:19], 0 offen")
    A("v_xor_b32 v5, 0x100, v4")
    A("buffer_load_dwordx4 v[12:15], v5, s[16:19], 0 offen")
    A("v_xor_b32 v5, 0x200, v4")
    A("buffer_load_dwordx4 v[16:19], v5, s[16:19], 0 offen")
    A("v_xor_b32 v5, 0x300, v4")
    A("buffer_load_dwordx4 v[20:23], v5, s[16:19], 0 offen")
    A("buffer_load_dword v6, v3, s[8:11], 0 offen sc1")
    A("v_lshrrev_b32 v104, 3, v0")
    A("v_and_b32 v105, 7, v0")
    A("v_and_b32 v106, 2, v104")
    A("v_xor_b32 v105, v105, v106")
    A("v_lshlrev_b32 v105, 4, v105")
    A("v_lshl_add_u32 v104, v104, 13, v105")
    A("v_xor_b32 v105, 64, v104")
    A("s_lshl_b32 s27, s3, 20")
    A("s_lshl_b32 s28, s4, 10")
    A("s_add_u32 s27, s27, s28")
    A("s_lshl_b32 s28, s21, 7")
    A("s_add_u32 s27, s27, s28")
    A("s_lshl_b32 s31, s3, 14")
    A(f"s_add_u32 s31, s31, {GATE}")
    A("s_mov_b32 s22, s31")
    A("s_mov_b32 s23, 0")
    A.label("L_qdma")
    for i in range(2):
        A("s_mov_b32 m0, s22")
        A("s_add_u32 s22, s22, 1024")
        A(f"buffer_load_dwordx4 v{104+i}, s[12:15], s27 offen nt lds")
        A("s_add_u32 s27, s27, 0x10000")
    A("s_add_u32 s23, s23, 1")
    A("s_cmp_lt_u32 s23, 8")
    A("s_cbranch_scc1 L_qdma")
    stamp(2)
    A("s_mov_b32 s23, 0xffff0000")
    A("s_waitcnt vmcnt(16)")
    stamp(3)
    XF = 24
    for i in range(16):
        A(f"v_lshlrev_b32 v{XF+2*i}, 16, v{8+i}")
        A(f"v_and_b32 v{XF+2*i+1}, s23, v{8+i}")
    load_tag(6)
    for i in range(8): A(f"v_pk_add_f32 v[{56+2*i}:{57+2*i}], v[{XF+2*i}:{XF+2*i+1}], v[{XF+16+2*i}:{XF+17+2*i}]")
    for i in range(4): A(f"v_pk_add_f32 v[{56+2*i}:{57+2*i}], v[{56+2*i}:{57+2*i}], v[{64+2*i}:{65+2*i}]")
    for i in range(2): A(f"v_pk_add_f32 v[{56+2*i}:{57+2*i}], v[{56+2*i}:{57+2*i}], v[{60+2*i}:{61+2*i}]")
    A("v_pk_add_f32 v[56:57], v[56:57], v[58:59]")
    A("v_add_f32 v56, v56, v57")
    rowsum(56)
    A("v_mul_f32 v72, 0x3b000000, v56")
    for i in range(16):
        t = 56 + 2*(i & 3)
        A(f"v_pk_add_f32 v[{t}:{t+1}], v[{XF+2*i}:{XF+2*i+1}], v[72:73] op_sel_hi:[1,0] neg_lo:[0,1] neg_hi:[0,1]")
        a = 74 + 2*(i & 1)
        if i < 2: A(f"v_pk_mul_f32 v[{a}:{a+1}], v[{t}:{t+1}], v[{t}:{t+1}]")
        else: A(f"v_pk_fma_f32 v[{a}:{a+1}], v[{t}:{t+1}], v[{t}:{t+1}], v[{a}:{a+1}]")
    A("v_pk_add_f32 v[74:75], v[74:75], v[76:77]")
    A("v_add_f32 v74, v74, v75")
    rowsum(74)
    A("v_mul_f32 v74, 0x3b000000, v74")
    A("v_cvt_pk_bf16_f32 v75, v72, v74")
    A("v_lshlrev_b32 v72, 16, v75")
    A("v_and_b32 v74, s23, v75")
    A(f"v_add_f32 v74, {EPS:#x}, v74")
    A("v_cvt_pk_bf16_f32 v74, v74, v74")
    A("v_and_b32 v74, s23, v74")
    A("v_sqrt_f32 v74, v74")
    A("v_cvt_pk_bf16_f32 v74, v74, v74")
    A("v_and_b32 v74, s23, v74")
    A("v_rcp_f32 v74, v74")
    for i in range(4):
        A(f"v_pk_add_f32 v[{XF+2*i}:{XF+2*i+1}], v[{XF+2*i}:{XF+2*i+1}], v[72:73] op_sel_hi:[1,0] neg_lo:[0,1] neg_hi:[0,1]")
    for i in range(4): A(f"v_cvt_pk_bf16_f32 v{8+i}, v{XF+2*i}, v{XF+2*i+1}")
    for i in range(4):
        A(f"v_lshlrev_b32 v{XF+2*i}, 16, v{8+i}")
        A(f"v_and_b32 v{XF+2*i+1}, s23, v{8+i}")
    for i in range(4):
        A(f"v_pk_mul_f32 v[{XF+2*i}:{XF+2*i+1}], v[{XF+2*i}:{XF+2*i+1}], v[74:75] op_sel_hi:[1,0]")
    for i in range(4): A(f"v_cvt_pk_bf16_f32 v{8+i}, v{XF+2*i}, v{XF+2*i+1}")
    A("s_lshl_b32 s27, s3, 10")
    A("v_lshl_add_u32 v7, v0, 4, s27")
    A(f"ds_write_b128 v7, v[8:11] offset:{XN}")
    A("v_bfe_u32 v12, v0, 2, 2")
    A("v_lshl_add_u32 v5, v12, 8, s27")
    A("v_lshl_add_u32 v5, v2, 4, v5")
    XA = 72
    for ks in range(4): A(f"ds_read_b128 v[{XA+4*ks}:{XA+4*ks+3}], v5 offset:{XN+64*ks}")
    A("v_and_b32 v13, 3, v0")
    A("v_lshlrev_b32 v104, 10, v2")
    A("v_lshl_add_u32 v104, v12, 7, v104")
    A("v_lshl_add_u32 v104, v13, 3, v104")
    A("v_lshrrev_b32 v12, 1, v12")
    A("v_and_b32 v14, 1, v2")
    A("v_lshl_add_u32 v12, v14, 1, v12")
    A("v_lshl_add_u32 v104, v12, 5, v104")
    A("v_add_u32 v104, s31, v104")
    A("v_xor_b32 v105, 32, v104")
    A("v_xor_b32 v106, 64, v104")
    A("v_xor_b32 v107, 0x60, v104")
    A("s_lshl_b32 s27, s4, 13")
    A("s_lshl_b32 s28, s21, 8")
    A("s_add_u32 s27, s27, s28")
    A(f"s_add_u32 s27, s27, {QA}")
    A("v_lshlrev_b32 v5, 4, v1")
    A("v_lshl_add_u32 v5, v2, 11, v5")
    stamp(4)
    DQ = 56
    def q_reads(ks):
        A(f"s_waitcnt vmcnt({12-4*ks})")
        for tau in range(4):
            r = 8 + 16*(ks & 1) + 4*tau
            A(f"ds_read_b64_tr_b16 v[{r}:{r+1}], v{104+tau} offset:{ks*4096}")
            A(f"ds_read_b64_tr_b16 v[{r+2}:{r+3}], v{104+tau} offset:{ks*4096+512}")
    q_reads(0)
    for ks in range(4):
        A("s_waitcnt lgkmcnt(0)")
        if ks < 3: q_reads(ks + 1)
        for tau in range(4):
            r = 8 + 16*(ks & 1) + 4*tau
            d = DQ + 4*tau
            A(f"v_mfma_f32_16x16x32_bf16 v[{d}:{d+3}], v[{XA+4*ks}:{XA+4*ks+3}], v[{r}:{r+3}], {'0' if ks == 0 else f'v[{d}:{d+3}]'}")
    for tau in range(1, 4): A(f"v_mov_b32 v{DQ+tau}, v{DQ+4*tau}")
    A(f"ds_write_b128 v7, v[{DQ}:{DQ+3}] offset:{QP}")
    A("s_waitcnt lgkmcnt(0)")
    stamp(5)
    A("s_barrier")
    A("s_cmp_lg_u32 s3, 0")
    A("s_cbranch_scc1 L_ffn")
    for k in range(1, 4): A(f"ds_read_b128 v[{8+4*k}:{11+4*k}], v7 offset:{QP+1024*k}")
    A("s_waitcnt lgkmcnt(0)")
    for i in range(2):
        A(f"v_pk_add_f32 v[{DQ+2*i}:{DQ+2*i+1}], v[{DQ+2*i}:{DQ+2*i+1}], v[{12+2*i}:{13+2*i}]")
        A(f"v_pk_add_f32 v[{16+2*i}:{17+2*i}], v[{16+2*i}:{17+2*i}], v[{20+2*i}:{21+2*i}]")
    for i in range(2):
        A(f"v_pk_add_f32 v[{DQ+2*i}:{DQ+2*i+1}], v[{DQ+2*i}:{DQ+2*i+1}], v[{16+2*i}:{17+2*i}]")
    A(f"v_cvt_pk_bf16_f32 v8, v{DQ}, v{DQ+1}")
    A(f"v_cvt_pk_bf16_f32 v10, v{DQ+2}, v{DQ+3}")
    A("v_mov_b32 v9, s24")
    A("v_mov_b32 v11, s24")
    A("buffer_store_dwordx4 v[8:11], v5, s[8:11], s27 offen sc1")
    stamp(6)
    A("s_branch L_ffn")

    A.label("L_na_other")
    A("s_cmp_gt_u32 s3, 7")
    A("s_cbranch_scc1 L_na_hi")
    A("s_sub_u32 s20, s3, 4")
    A("v_lshlrev_b32 v5, 4, v0")
    for i in range(4): A(f"v_mov_b32 v{8+i}, -1")
    A("s_lshl_b32 s27, s4, 3")
    A("s_add_u32 s27, s27, s21")
    A("s_lshl_b32 s27, s27, 2")
    A("s_add_u32 s27, s27, s20")
    A("s_lshl_b32 s27, s27, 10")
    A(f"s_add_u32 s27, s27, {GL}")
    A("buffer_store_dwordx4 v[8:11], v5, s[8:11], s27 offen sc1")
    A("s_cmp_gt_u32 s20, 1")
    A("s_cbranch_scc1 L_clr_d")
    A("s_lshl_b32 s27, s21, 1")
    A("s_add_u32 s27, s27, s20")
    A("s_lshl_b32 s27, s27, 3")
    A("s_add_u32 s27, s27, s4")
    A("s_lshl_b32 s27, s27, 10")
    A(f"s_add_u32 s27, s27, {CR}")
    A("buffer_store_dwordx4 v[8:11], v5, s[8:11], s27 offen sc1")
    A.label("L_clr_d")
    A("s_cmp_eq_u32 s5, 31")
    A("s_cbranch_scc1 L_clr_done")
    A("s_mul_i32 s27, s4, 7")
    A("s_add_u32 s27, s27, s21")
    A("s_lshl_b32 s27, s27, 7")
    A(f"s_mul_i32 s28, s20, {16*DRS}")
    A("s_add_u32 s27, s27, s28")
    A(f"s_add_u32 s27, s27, {DR}")
    A("v_lshrrev_b32 v7, 3, v0")
    A(f"v_mul_u32_u24 v7, {DRS}, v7")
    A("v_and_b32 v12, 7, v0")
    A("v_lshl_add_u32 v7, v12, 4, v7")
    A("buffer_store_dwordx4 v[8:11], v7, s[8:11], s27 offen sc1")
    A(f"s_add_u32 s27, s27, {8*DRS}")
    A("buffer_store_dwordx4 v[8:11], v7, s[8:11], s27 offen sc1")
    A.label("L_clr_done")
    A("s_waitcnt vmcnt(0)")
    stamp(5)
    A("s_barrier")
    A("s_branch L_ffn")
    A.label("L_na_hi")
    if o["prefetch"]:
        A("s_cmp_eq_u32 s3, 14")
        A("s_cbranch_scc1 L_pref")
    A("s_cmp_lg_u32 s3, 15")
    A("s_cbranch_scc1 L_exit")
    A("buffer_load_dword v6, v3, s[8:11], 0 offen sc1")
    dbg_hello()
    A("v_and_b32 v7, 7, v0")
    A("v_lshlrev_b32 v7, 8, v7")
    A("s_lshl_b32 s29, s4, 13")
    A(f"s_add_u32 s29, s29, {QA}")
    A("s_waitcnt vmcnt(0)")
    load_tag(6)
    A("s_barrier")
    spin_head("L_h_poll", "L_h_ok")
    A("buffer_load_dwordx2 v[14:15], v7, s[8:11], s29 offen sc1")
    A("s_waitcnt vmcnt(0)")
    A("v_cmp_ne_u32 vcc, s24, v15")
    A("s_cbranch_vccnz L_h_poll")
    A.label("L_h_ok")
    stamp(3)
    A("s_cmp_eq_u32 s5, 31")
    A("s_cbranch_scc0 L_h_ffn")
    A("s_lshl_b32 s29, s4, 2")
    A(f"s_add_u32 s29, s29, {GF}")
    A("v_mov_b32 v12, s24")
    A("s_mov_b64 exec, 1")
    A("buffer_store_dword v12, v3, s[8:11], s29 offen sc1")
    A("s_mov_b64 exec, -1")
    end()
    A.label("L_h_ffn")
    if o["trigger"] == "stats":
        A("v_lshlrev_b32 v5, 4, v0")
        A("s_lshl_b32 s29, s4, 15")
        A(f"s_add_u32 s29, s29, {GL+BS_O}")
        spin_head("L_t_poll", "L_t_ok")
        A("buffer_load_dwordx4 v[14:17], v5, s[8:11], s29 offen sc1")
        A("s_waitcnt vmcnt(0)")
        A("v_min_u32 v14, v14, v16")
        A("v_cmp_ne_u32 vcc, -1, v14")
        A("s_cbranch_vccz L_t_poll")
        A.label("L_t_ok")
        stamp(4)
    end()
    if o["prefetch"]:
        A.label("L_pref")
        A("s_getpc_b64 s[56:57]")
        A.label("L_pc")
        A(f"s_sub_u32 s56, s56, L_pc-{KNAME}")
        A("s_subb_u32 s57, s57, 0")
        A("v_lshlrev_b32 v4, 7, v0")
        A(f"s_mov_b32 s27, L_code_end-{KNAME}-4")
        for i in range(2):
            A(f"v_add_u32 v5, {8192*i}, v4")
            A("v_min_u32 v5, s27, v5")
            A(f"global_load_dword v{8+i}, v5, s[56:57]")
        A("s_endpgm")

    A.label("L_v_go")
    stamp(2)
    A("v_lshl_add_u32 v5, v0, 4, s31")
    A("v_lshl_add_u32 v6, v0, 2, s31")
    A("s_mov_b32 s16, 0x05040100")
    A("s_mov_b32 s17, 0x07060302")
    A("s_barrier")
    stamp(3)
    PF = 8
    BE = 44
    DE = 76
    A(f"ds_read_b128 v[{PF}:{PF+3}], v5")
    for i in range(3):
        A(f"s_waitcnt vmcnt({6-2*i})")
        for e in range(8):
            A(f"v_perm_b32 v{BE+4*e+i}, v{VV+4*(2*i+1)+(e>>1)}, v{VV+4*(2*i)+(e>>1)}, s{16+(e&1)}")
    A("s_waitcnt vmcnt(0) lgkmcnt(0)")
    stamp(4)
    A("s_setprio 3")
    def perm3(e): A(f"v_perm_b32 v{BE+4*e+3}, v{VV+28+(e>>1)}, v{VV+24+(e>>1)}, s{16+(e&1)}")
    def pv(e): A(f"v_mfma_f32_16x16x32_bf16 v[{DE+4*e}:{DE+4*e+3}], v[{PF}:{PF+3}], v[{BE+4*e}:{BE+4*e+3}], 0")
    perm3(0); perm3(1); perm3(2)
    for e in range(8):
        pv(e)
        if e + 3 < 8: perm3(e + 3)
    for ep in range(4):
        A(f"ds_write2st64_b32 v6, v{DE+8*ep}, v{DE+8*ep+4} offset0:{4+2*ep} offset1:{5+2*ep}")
    end()

    A.label("L_a_kdone")
    A("v_mov_b32 v109, 1")
    A("s_mov_b64 exec, 1")
    A(f"ds_add_u32 v3, v109 offset:{KCNT}")
    A("s_mov_b64 exec, -1")
    stamp(2)
    QF = 8
    KF = 24
    SC = 56
    T0 = 80
    ONES = 96
    LS = 100
    A("s_sub_u32 s29, s29, s3")
    A("s_sub_u32 s19, s3, 1")
    A("v_xor_b32 v4, v1, v2")
    A("v_lshlrev_b32 v4, 4, v4")
    A("v_lshl_add_u32 v4, v1, 8, v4")
    A("v_add_u32 v4, s31, v4")
    A("v_xor_b32 v5, 64, v4")
    A("v_xor_b32 v6, 0x80, v4")
    A("v_xor_b32 v7, 0xc0, v4")
    A("v_lshrrev_b32 v104, 2, v1")
    A("v_lshlrev_b32 v105, 8, v104")
    A("v_lshl_add_u32 v105, v2, 4, v105")
    A("v_lshlrev_b32 v104, 4, v104")
    A("s_lshl_b32 s27, s19, 2")
    A("v_add_u32 v108, s27, v104")
    A("v_lshl_add_u32 v106, v0, 4, s31")
    A("s_lshl_b32 s27, s19, 8")
    A("v_lshl_add_u32 v107, v0, 2, s27")
    for i in range(4): A(f"v_mov_b32 v{ONES+i}, 0x3f803f80")
    A("s_mov_b32 s16, 0xffff0000")
    A(f"s_mov_b32 s17, {SCALE:#x}")
    A(f"s_mov_b32 s18, {LOG2E:#x}")
    spin_head("L_a_qspin", "L_a_qok")
    A(f"ds_read_b32 v110, v3 offset:{QFLAG}")
    A("s_waitcnt lgkmcnt(0)")
    A("v_readfirstlane_b32 s26, v110")
    A("s_cmp_lg_u32 s26, 0")
    A("s_cbranch_scc1 L_a_qok")
    A("s_sleep 2")
    A("s_branch L_a_qspin")
    A.label("L_a_qok")
    stamp(3)
    for d in range(4): A(f"ds_read_b128 v[{QF+4*d}:{QF+4*d+3}], v105 offset:{QL+64*d}")
    A("s_waitcnt vmcnt(0)")
    stamp(4)
    def qk_unit(u):
        off = (u & 1) * 32768
        for tau in range(2):
            for d in range(4):
                r = KF + 16*tau + 4*d
                A(f"ds_read_b128 v[{r}:{r+3}], v{4+d} offset:{off + tau*4096}")
        A("s_waitcnt lgkmcnt(0)")
        for d in range(4):
            for tau in range(2):
                r = KF + 16*tau + 4*d
                s = SC + 8*u + 4*tau
                A(f"v_mfma_f32_16x16x32_bf16 v[{s}:{s+3}], v[{r}:{r+3}], v[{QF+4*d}:{QF+4*d+3}], {'0' if d == 0 else f'v[{s}:{s+3}]'}")
    def round_unit(u):
        s = SC + 8*u
        for i in range(4): A(f"v_cvt_pk_bf16_f32 v{T0+i}, v{s+2*i}, v{s+2*i+1}")
        for i in range(4):
            A(f"v_lshlrev_b32 v{s+2*i}, 16, v{T0+i}")
            A(f"v_and_b32 v{s+2*i+1}, s16, v{T0+i}")
        for i in range(8): A(f"v_mul_f32 v{s+i}, s17, v{s+i}")
        for i in range(4): A(f"v_cvt_pk_bf16_f32 v{T0+i}, v{s+2*i}, v{s+2*i+1}")
        for i in range(4):
            A(f"v_lshlrev_b32 v{s+2*i}, 16, v{T0+i}")
            A(f"v_and_b32 v{s+2*i+1}, s16, v{T0+i}")
    qk_unit(0)
    qk_unit(1)
    round_unit(0)
    round_unit(1)
    max_tree(110, range(SC, SC+16), "v_max3_f32", "v_max_f32")
    A("s_cmp_le_u32 s29, 7")
    A("s_cbranch_scc1 L_a_no3a")
    for d in range(4): A(f"v_add_u32 v{4+d}, 0x10000, v{4+d}")
    qk_unit(2)
    round_unit(2)
    for i in range(4): A(f"v_max3_f32 v110, v110, v{SC+16+2*i}, v{SC+17+2*i}")
    A.label("L_a_no3a")
    A("v_mov_b32 v111, v110")
    A("v_permlane32_swap_b32 v110, v111")
    A("v_max_f32 v110, v110, v111")
    A("v_mov_b32 v111, v110")
    A("v_permlane16_swap_b32 v110, v111")
    A("v_max_f32 v110, v110, v111")
    A(f"ds_write_b32 v108, v110 offset:{MAXA}")
    A("s_mov_b64 exec, 1")
    A(f"ds_add_u32 v3, v109 offset:{ACNT}")
    A("s_mov_b64 exec, -1")
    spin_head("L_a_mspin", "L_a_mok")
    A(f"ds_read_b32 v111, v3 offset:{ACNT}")
    A(f"ds_read_b128 v[112:115], v104 offset:{MAXA}")
    A("s_waitcnt lgkmcnt(0)")
    A("v_readfirstlane_b32 s27, v111")
    A("s_cmp_lt_u32 s27, 4")
    A("s_cbranch_scc1 L_a_mspin")
    A.label("L_a_mok")
    A("v_max3_f32 v110, v112, v113, v114")
    A("v_max_f32 v110, v110, v115")
    def p_unit(u):
        s = SC + 8*u
        for i in range(8): A(f"v_sub_f32 v{s+i}, v{s+i}, v110")
        for i in range(8): A(f"v_mul_f32 v{s+i}, s18, v{s+i}")
        for i in range(8): A(f"v_exp_f32 v{s+i}, v{s+i}")
        t = T0 + 4*u
        for i in range(4): A(f"v_cvt_pk_bf16_f32 v{t+i}, v{s+2*i}, v{s+2*i+1}")
        if u == 2: A("v_add_u32 v106, 0x10000, v106")
        A(f"ds_write_b128 v106, v[{t}:{t+3}] offset:{(u&1)*32768}")
        A(f"v_mfma_f32_16x16x32_bf16 v[{LS}:{LS+3}], v[{t}:{t+3}], v[{ONES}:{ONES+3}], {'0' if u == 0 else f'v[{LS}:{LS+3}]'}")
    p_unit(0)
    p_unit(1)
    A("s_cmp_le_u32 s29, 7")
    A("s_cbranch_scc1 L_a_no3b")
    p_unit(2)
    A.label("L_a_no3b")
    A("s_nop 7")
    A(f"ds_write_b32 v107, v{LS} offset:{LACC}")
    A("s_lshl_b32 s20, s6, 2")
    A("s_add_u32 s20, s20, s7")
    A("s_lshr_b32 s21, s20, 1")
    A("s_and_b32 s20, s20, 1")
    srd(12, P_WO, 0x400000)
    A("v_lshrrev_b32 v4, 3, v0")
    A("v_and_b32 v5, 7, v0")
    A("v_lshlrev_b32 v5, 4, v5")
    A("v_lshl_add_u32 v4, v4, 10, v5")
    A("v_xor_b32 v5, 32, v4")
    A("v_xor_b32 v6, 64, v4")
    A("v_xor_b32 v7, 0x60, v4")
    A("s_lshl_b32 s27, s4, 1")
    A("s_add_u32 s27, s27, s20")
    A("s_lshl_b32 s27, s27, 2")
    A("s_add_u32 s27, s27, s19")
    A("s_lshl_b32 s27, s27, 16")
    A("s_lshl_b32 s22, s21, 7")
    A("s_add_u32 s27, s27, s22")
    A("s_lshl_b32 s22, s19, 13")
    A(f"s_add_u32 s22, s22, {WL}")
    A("s_lshl_b32 s23, s19, 9")
    A(f"s_add_u32 s23, s23, {KL+1024}")
    A("v_lshl_add_u32 v108, v0, 2, s23")
    A("v_add_u32 v109, 0x10000, v108")
    A("s_lshl_b32 s31, s4, 15")
    A(f"s_add_u32 s31, s31, {GL}")
    A("s_lshl_b32 s23, s5, 10")
    A("s_add_u32 s23, s23, s31")
    A("s_waitcnt lgkmcnt(0)")
    stamp(5)
    A("s_barrier")
    stamp(6)
    A("s_cmp_ge_u32 s7, 4")
    A("s_cbranch_scc1 L_a_nowo")
    A("s_setprio 0")
    for i in range(8):
        A("s_mov_b32 m0, s22")
        A("s_add_u32 s22, s22, 1024")
        A(f"buffer_load_dwordx4 v{4 + (i&1) + 2*((i>>2)&1)}, s[12:15], s27 offen nt lds")
        A("s_add_u32 s27, s27, 8192")
    stamp(7)
    A("s_lshr_b32 s25, s19, 1")
    A("s_and_b32 s22, s19, 1")
    A("v_bfe_u32 v8, v0, 2, 2")
    A("v_and_b32 v9, 3, v0")
    A("v_lshlrev_b32 v4, 12, v2")
    A("v_lshrrev_b32 v10, 1, v8")
    A("v_mul_u32_u24 v11, 1056, v10")
    A("v_add_u32 v4, v4, v11")
    A("v_and_b32 v10, 1, v8")
    A("v_lshl_add_u32 v4, v10, 7, v4")
    A("v_lshl_add_u32 v4, v9, 3, v4")
    A("v_and_b32 v10, 1, v2")
    A("v_lshl_add_u32 v4, v10, 6, v4")
    A("s_lshl_b32 s27, s25, 14")
    A(f"s_add_u32 s27, s27, {WL}")
    A("v_add_u32 v4, s27, v4")
    A("v_xor_b32 v5, 32, v4")
    A("v_xor_b32 v6, 64, v4")
    A("v_xor_b32 v7, 0x60, v4")
    A("v_mul_u32_u24 v8, 6, v8")
    A("v_min_u32 v9, 2, v9")
    A("v_add_u32 v8, v8, v9")
    A("v_lshlrev_b32 v8, 10, v8")
    A("v_lshl_add_u32 v104, v2, 4, v8")
    A("s_lshl_b32 s27, s20, 1")
    A("s_add_u32 s27, s27, s25")
    A("s_lshl_b32 s27, s27, 6")
    A("s_add_u32 s27, s27, s31")
    A("s_mul_i32 s28, s22, 3072")
    A("s_add_u32 s28, s28, s27")
    A(f"s_add_u32 s29, s27, {BS_O}")
    A("s_lshl_b32 s27, s22, 5")
    A("v_lshl_add_u32 v105, v2, 8, s27")
    A("v_xor_b32 v106, 32, v105")
    A("s_lshl_b32 s27, s19, 10")
    A("v_lshl_add_u32 v110, v0, 4, s27")
    A.label("L_a_nowo")
    A("s_setprio 3")
    A("v_mov_b32 v32, 0")
    A("v_mov_b32 v33, 0")
    A("s_barrier")
    for u in range(8):
        A(f"ds_read2st64_b32 v[{12+2*u}:{13+2*u}], v108 offset0:{32*u} offset1:{32*u+1}")
    for u in range(2):
        A(f"ds_read2st64_b32 v[{28+2*u}:{29+2*u}], v109 offset0:{32*u} offset1:{32*u+1}")
    A("s_cmp_ge_u32 s7, 4")
    A("s_cbranch_scc1 L_a_o10")
    A("ds_read2st64_b32 v[32:33], v109 offset0:64 offset1:65")
    A.label("L_a_o10")
    A("s_waitcnt lgkmcnt(0)")
    for i in range(5): A(f"v_pk_add_f32 v[{12+2*i}:{13+2*i}], v[{12+2*i}:{13+2*i}], v[{24+2*i}:{25+2*i}]")
    for i in range(3): A(f"v_pk_add_f32 v[{12+2*i}:{13+2*i}], v[{12+2*i}:{13+2*i}], v[{18+2*i}:{19+2*i}]")
    A("v_pk_add_f32 v[12:13], v[12:13], v[14:15]")
    A("v_pk_add_f32 v[12:13], v[12:13], v[16:17]")
    A("v_cvt_pk_bf16_f32 v12, v12, v13")
    A("v_min_u32 v12, -2, v12")
    lstore("buffer_store_dword v12, v107, s[8:11], s23 offen")
    stamp(8)
    A("s_cmp_ge_u32 s7, 4")
    A(f"s_cbranch_scc1 {EXIT}")
    A("s_waitcnt vmcnt(1)")
    stamp(9)
    A("s_barrier")
    AF = 8
    ST = 24
    BF = 36
    DW = 112
    def wo_poll():
        for ks in range(4):
            A(f"buffer_load_dwordx4 v[{AF+4*ks}:{AF+4*ks+3}], v104, s[8:11], s28 offen offset:{256*ks} sc1")
        A(f"buffer_load_dwordx4 v[{ST}:{ST+3}], v105, s[8:11], s29 offen sc1")
        A(f"buffer_load_dwordx2 v[{ST+4}:{ST+5}], v105, s[8:11], s29 offen offset:16 sc1")
        A(f"buffer_load_dwordx4 v[{ST+8}:{ST+11}], v106, s[8:11], s29 offen sc1")
        A(f"buffer_load_dwordx2 v[{ST+6}:{ST+7}], v106, s[8:11], s29 offen offset:16 sc1")
    wo_poll()
    for ks in range(4):
        for tau in range(4):
            r = BF + 16*ks + 4*tau
            A(f"ds_read_b64_tr_b16 v[{r}:{r+1}], v{4+tau} offset:{ks*256}")
            A(f"ds_read_b64_tr_b16 v[{r+2}:{r+3}], v{4+tau} offset:{ks*256+2048}")
    A("s_mov_b32 s30, 0")
    A("s_branch L_wo_chk")
    A.label("L_wo_poll")
    A("s_add_u32 s30, s30, 1")
    A(f"s_cmp_gt_u32 s30, {SPIN}")
    A("s_cbranch_scc1 L_wo_go")
    wo_poll()
    A.label("L_wo_chk")
    A("s_waitcnt vmcnt(0)")
    max_tree(108, range(AF, AF+14))
    max_tree(109, range(AF+14, AF+28))
    A("v_max_u32 v108, v108, v109")
    A("v_cmp_eq_u32 vcc, -1, v108")
    A("s_cbranch_vccnz L_wo_poll")
    A.label("L_wo_go")
    A("s_waitcnt lgkmcnt(0)")
    stamp(10)
    mf = []
    for ks in range(4):
        for tau in range(4):
            r = BF + 16*ks + 4*tau
            d = DW + 4*tau
            mf.append(f"v_mfma_f32_16x16x32_bf16 v[{d}:{d+3}], v[{AF+4*ks}:{AF+4*ks+3}], v[{r}:{r+3}], {'0' if ks == 0 else f'v[{d}:{d+3}]'}")
    va = []
    va.append(f"v_max3_f32 v108, v{ST}, v{ST+2}, v{ST+4}")
    va.append(f"v_max3_f32 v109, v{ST+6}, v{ST+8}, v{ST+10}")
    va.append("v_max_f32 v108, v108, v109")
    for i in range(6): va.append(f"v_sub_f32 v{ST+2*i}, v{ST+2*i}, v108")
    for i in range(6): va.append(f"v_mul_f32 v{ST+2*i}, s18, v{ST+2*i}")
    for i in range(6): va.append(f"v_exp_f32 v{ST+2*i}, v{ST+2*i}")
    va.append(f"v_mul_f32 v109, v{ST}, v{ST+1}")
    for i in range(1, 6): va.append(f"v_fmac_f32 v109, v{ST+2*i}, v{ST+2*i+1}")
    va.append("v_rcp_f32 v109, v109")
    for i in range(3): va.append(f"v_mul_f32 v{ST+2*i}, v{ST+2*i}, v109")
    for i in range(16):
        A(mf[i])
        for k in range(2):
            if va: A(va.pop(0))
    while va: A(va.pop(0))
    for tau in range(4):
        d = DW + 4*tau
        A(f"v_mul_f32 v{100+tau}, v{ST}, v{d}")
        A(f"v_fmac_f32 v{100+tau}, v{ST+2}, v{d+1}")
        A(f"v_fmac_f32 v{100+tau}, v{ST+4}, v{d+2}")
    A(f"ds_write_b128 v110, v[100:103] offset:{CACC}")
    end()

    A.label("L_w0_go")
    A("v_lshlrev_b32 v5, 4, v0")
    A("v_add_u32 v7, 0x1000, v5")
    A("v_and_b32 v8, 7, v0")
    A("v_lshlrev_b32 v8, 2, v8")
    A("s_lshl_b32 s27, s4, 2")
    A("s_add_u32 s27, s27, s6")
    A("s_lshl_b32 s27, s27, 11")
    A(f"s_add_u32 s27, s27, {QA}")
    A("s_lshl_b32 s29, s4, 5")
    A("v_lshlrev_b32 v44, 1, v1")
    A("v_lshl_add_u32 v44, v2, 7, v44")
    A("s_mul_i32 s25, s25, 0x01010101")
    A("s_lshl_b32 s31, s4, 15")
    A(f"s_add_u32 s31, s31, {GL}")
    A("s_mov_b32 s23, 0xffff0000")
    A("s_mov_b32 s18, 0x01010101")
    A("s_mov_b32 s19, 0x80808080")
    A("s_lshl_b32 s17, s6, 2")
    A("s_add_u32 s17, s17, s7")
    A("s_and_b32 s20, s17, 1")
    A("s_lshr_b32 s21, s17, 1")
    srd(12, P_X, 0x1000)
    A("s_lshl_b32 s22, s20, 11")
    A("s_lshl_b32 s28, s21, 7")
    A("s_add_u32 s22, s22, s28")
    A("v_and_b32 v10, 1, v2")
    A("v_lshlrev_b32 v10, 10, v10")
    A("v_lshrrev_b32 v9, 5, v0")
    A("v_lshl_add_u32 v10, v9, 6, v10")
    A("v_lshl_add_u32 v11, v1, 1, v10")
    A("buffer_load_ushort v101, v11, s[12:15], s22 offen")
    A("buffer_load_ushort v102, v11, s[12:15], s22 offen offset:32")
    A("v_lshl_add_u32 v103, v1, 2, v10")
    A("s_add_u32 s22, s22, s31")
    A(f"s_add_u32 s22, s22, {HR_O}")
    A("s_lshl_b32 s28, s21, 14")
    A("s_lshl_b32 s16, s4, 10")
    A("s_add_u32 s28, s28, s16")
    A("s_lshl_b32 s16, s20, 9")
    A("s_add_u32 s28, s28, s16")
    A(f"s_add_u32 s28, s28, {CR}")
    A("v_and_b32 v10, 31, v0")
    A("v_lshl_add_u32 v10, v10, 4, s28")
    A("v_lshl_add_u32 v100, v9, 13, v10")
    spin_head("L_k_spin", "L_k_ok")
    A(f"ds_read_b32 v10, v3 offset:{KCNT}")
    A("s_waitcnt lgkmcnt(0)")
    A("v_readfirstlane_b32 s16, v10")
    A("s_cmp_ge_u32 s16, 4")
    A("s_cbranch_scc1 L_k_ok")
    A("s_sleep 4")
    A("s_branch L_k_spin")
    A.label("L_k_ok")
    A("s_waitcnt vmcnt(0)")
    load_tag(6)
    stamp(2)
    def q_issue(base):
        A(f"buffer_load_dwordx4 v[{base}:{base+3}], v5, s[8:11], s27 offen sc1")
        A(f"buffer_load_dwordx4 v[{base+4}:{base+7}], v5, s[8:11], s27 offen offset:1024 sc1")
        A(f"buffer_load_dword v{base+8}, v8, s[56:59], s29 offen sc1")
    def q_check(base):
        A(f"v_xor_b32 v40, s24, v{base+1}")
        A(f"v_xor_b32 v41, s24, v{base+3}")
        A(f"v_xor_b32 v42, s24, v{base+5}")
        A("v_or3_b32 v40, v40, v41, v42")
        A(f"v_xor_b32 v41, s24, v{base+7}")
        A(f"v_subrev_u32 v42, s18, v{base+8}")
        A("v_and_b32 v42, s19, v42")
        A("v_or3_b32 v40, v40, v41, v42")
        A("v_cmp_ne_u32 vcc, 0, v40")
    q_issue(12)
    A("s_sleep 8")
    spin_head("L_q_poll", "L_q_ok")
    q_issue(24)
    A("s_waitcnt vmcnt(3)")
    q_check(12)
    A("s_cbranch_vccz L_q_ok")
    q_issue(12)
    A("s_waitcnt vmcnt(3)")
    q_check(24)
    A("s_cbranch_vccnz L_q_poll")
    A("s_mov_b32 s16, 1")
    for i in range(9): A(f"v_mov_b32 v{48+i}, v{24+i}")
    A("s_branch L_q_ok2")
    A.label("L_q_ok")
    for i in range(9): A(f"v_mov_b32 v{48+i}, v{12+i}")
    A.label("L_q_ok2")
    A("v_cmp_ne_u32 vcc, s25, v56")
    for i in range(2):
        for p in range(2):
            r = 48 + 4*i + 2*p
            A(f"ds_write_b16 v44, v{r} offset:{QL+512*i+64*p}")
            A(f"ds_write_b16_d16_hi v44, v{r} offset:{QL+512*i+64*p+32}")
    A("s_cmp_eq_u64 vcc, 0")
    A("s_cselect_b32 s26, 2, 1")
    A("v_mov_b32 v45, s26")
    A(f"ds_write_b32 v3, v45 offset:{QFLAG}")
    stamp(3)
    A("s_cmp_ge_u32 s7, 3")
    A("s_cselect_b32 s27, 8, 0")
    A("s_lshl_b32 s28, s7, 3")
    A("s_add_u32 s27, s27, s28")
    A("s_lshl_b32 s28, s6, 8")
    A("s_add_u32 s27, s27, s28")
    A("s_add_u32 s27, s27, s31")
    A(f"s_add_u32 s27, s27, {BS_O}")
    A("v_lshlrev_b32 v46, 6, v2")
    A("v_lshlrev_b32 v9, 4, v2")
    A("v_lshlrev_b32 v6, 2, v0")
    A("v_lshlrev_b32 v101, 16, v101")
    A("v_lshlrev_b32 v102, 16, v102")
    A("s_waitcnt lgkmcnt(0)")
    A("s_barrier")
    A(f"ds_read_b128 v[60:63], v9 offset:{MAXA}")
    A(f"ds_read2st64_b32 v[64:65], v6 offset0:{LACC//256} offset1:{LACC//256+1}")
    A(f"ds_read2st64_b32 v[66:67], v6 offset0:{LACC//256+2} offset1:{LACC//256+3}")
    A("s_waitcnt lgkmcnt(0)")
    A("v_max3_f32 v60, v60, v61, v62")
    A("v_max_f32 v60, v60, v63")
    A("v_add_f32 v64, v64, v65")
    A("v_add_f32 v66, v66, v67")
    A("v_add_f32 v61, v64, v66")
    A("v_min_u32 v60, -2, v60")
    A("v_min_u32 v61, -2, v61")
    A("s_mov_b32 exec_lo, 0x00010001")
    A("s_mov_b32 exec_hi, 0x00010001")
    lstore("buffer_store_dwordx2 v[60:61], v46, s[8:11], s27 offen")
    A("s_mov_b64 exec, -1")
    stamp(4)
    A("s_cmp_ge_u32 s7, 4")
    A("s_cbranch_scc1 L_final")
    A(f"s_mov_b32 s29, {GF}")
    A("buffer_load_dword v40, v8, s[8:11], s29 offen sc1")
    A("s_lshl_b32 s27, s17, 13")
    A(f"s_add_u32 s27, s27, {CR}")
    A("s_barrier")
    A("s_barrier")
    stamp(5)
    spin_head("L_gf_poll", "L_gf_ok")
    A("s_waitcnt vmcnt(0)")
    A("v_cmp_ne_u32 vcc, s24, v40")
    A("s_cbranch_vccz L_gf_ok")
    A("buffer_load_dword v40, v8, s[8:11], s29 offen sc1")
    A("s_branch L_gf_poll")
    A.label("L_gf_ok")
    stamp(6)
    A("s_barrier")
    for k in range(4): A(f"ds_read_b128 v[{12+4*k}:{15+4*k}], v5 offset:{CACC+1024*k}")
    A("s_waitcnt lgkmcnt(0)")
    for i in range(4): A(f"v_pk_add_f32 v[{12+2*i}:{13+2*i}], v[{12+2*i}:{13+2*i}], v[{20+2*i}:{21+2*i}]")
    for i in range(2): A(f"v_pk_add_f32 v[{12+2*i}:{13+2*i}], v[{12+2*i}:{13+2*i}], v[{16+2*i}:{17+2*i}]")
    for i in range(4): A(f"v_min_u32 v{12+i}, -2, v{12+i}")
    A("buffer_store_dwordx4 v[12:15], v100, s[8:11], 0 offen sc1")
    stamp(7)
    spin_head("L_c_poll", "L_c_ok")
    for i in range(8):
        A(f"buffer_load_dwordx4 v[{16+4*i}:{19+4*i}], v{5 if i < 4 else 7}, s[8:11], s27 offen offset:{(i&3)*1024} sc1")
    A("s_waitcnt vmcnt(0)")
    max_tree(48, range(16, 32))
    max_tree(49, range(32, 48))
    A("v_max_u32 v48, v48, v49")
    A("v_cmp_eq_u32 vcc, -1, v48")
    A("s_cbranch_vccnz L_c_poll")
    A.label("L_c_ok")
    stamp(8)
    for i in range(8): A(f"v_pk_add_f32 v[{16+2*i}:{17+2*i}], v[{16+2*i}:{17+2*i}], v[{32+2*i}:{33+2*i}]")
    for i in range(4): A(f"v_pk_add_f32 v[{16+2*i}:{17+2*i}], v[{16+2*i}:{17+2*i}], v[{24+2*i}:{25+2*i}]")
    for i in range(2): A(f"v_pk_add_f32 v[{16+2*i}:{17+2*i}], v[{16+2*i}:{17+2*i}], v[{20+2*i}:{21+2*i}]")
    A("v_permlane32_swap_b32 v16, v18")
    A("v_permlane32_swap_b32 v17, v19")
    A("v_add_f32 v16, v16, v18")
    A("v_add_f32 v17, v17, v19")
    A("v_cvt_pk_bf16_f32 v16, v16, v17")
    A("v_and_b32 v17, s23, v16")
    A("v_lshlrev_b32 v16, 16, v16")
    A("v_add_f32 v16, v16, v101")
    A("v_add_f32 v17, v17, v102")
    A("v_cvt_pk_bf16_f32 v16, v16, v17")
    A("v_min_u32 v16, -2, v16")
    lstore("buffer_store_dword v16, v103, s[8:11], s22 offen")
    stamp(9)
    end()
    A.label("L_final")
    A("s_barrier")
    srd(12, P_OUT, 0x1000)
    A("s_sub_u32 s20, s7, 4")
    A("v_and_b32 v8, 7, v0")
    A("s_lshl_b32 s27, s20, 3")
    A("v_add_u32 v8, s27, v8")
    A("v_lshrrev_b32 v9, 5, v0")
    A("v_lshlrev_b32 v9, 6, v9")
    A("v_lshl_add_u32 v9, v8, 2, v9")
    A("s_lshl_b32 s27, s6, 10")
    A("s_lshl_b32 s28, s4, 7")
    A("s_add_u32 s21, s27, s28")
    A("s_add_u32 s27, s21, s31")
    A(f"s_add_u32 s27, s27, {HR_O}")
    A("v_lshlrev_b32 v10, 5, v2")
    A("v_lshl_add_u32 v10, v8, 1, v10")
    A("v_and_b32 v11, 1, v2")
    A("v_lshlrev_b32 v11, 4, v11")
    A("s_lshl_b32 s28, s4, 3")
    A("s_lshl_b32 s29, s6, 1")
    A("s_add_u32 s28, s28, s29")
    A("s_add_u32 s28, s28, s20")
    A(f"s_mul_i32 s29, s28, {DRS}")
    A(f"s_add_u32 s29, s29, {DR}")
    spin_head("L_fh_poll", "L_fh_ok")
    A("s_sleep 4")
    A("buffer_load_dword v12, v9, s[8:11], s27 offen sc1")
    A("s_waitcnt vmcnt(0)")
    A("v_cmp_eq_u32 vcc, -1, v12")
    A("s_cbranch_vccnz L_fh_poll")
    A.label("L_fh_ok")
    stamp(7)
    A("v_lshrrev_b32 v12, v11, v12")
    A("v_lshlrev_b32 v12, 16, v12")
    spin_head("L_d_poll", "L_d_ok")
    for i in range(7):
        A(f"buffer_load_dwordx4 v[{16+4*i}:{19+4*i}], v{5 if i < 4 else 7}, s[8:11], s29 offen offset:{(i&3)*1024} sc1")
    A("s_waitcnt vmcnt(0)")
    max_tree(48, range(16, 30))
    max_tree(49, range(30, 44))
    A("v_max_u32 v48, v48, v49")
    A("v_cmp_eq_u32 vcc, -1, v48")
    A("s_cbranch_vccnz L_d_poll")
    A.label("L_d_ok")
    stamp(8)
    for i in range(6): A(f"v_pk_add_f32 v[{16+2*i}:{17+2*i}], v[{16+2*i}:{17+2*i}], v[{32+2*i}:{33+2*i}]")
    for i in range(4): A(f"v_pk_add_f32 v[{16+2*i}:{17+2*i}], v[{16+2*i}:{17+2*i}], v[{24+2*i}:{25+2*i}]")
    for i in range(2): A(f"v_pk_add_f32 v[{16+2*i}:{17+2*i}], v[{16+2*i}:{17+2*i}], v[{20+2*i}:{21+2*i}]")
    A("v_permlane32_swap_b32 v16, v18")
    A("v_permlane32_swap_b32 v17, v19")
    A("v_add_f32 v16, v16, v18")
    A("v_add_f32 v17, v17, v19")
    A("v_permlane16_swap_b32 v16, v17")
    A("v_add_f32 v16, v16, v17")
    A("v_add_f32_dpp v16, v16, v16 row_ror:8 row_mask:0xf bank_mask:0xf")
    A("v_cvt_pk_bf16_f32 v16, v16, v16")
    A("v_and_b32 v16, s23, v16")
    A("v_add_f32 v16, v16, v12")
    A("v_cvt_pk_bf16_f32 v16, v16, v16")
    A("s_mov_b32 exec_lo, 0x00ff00ff")
    A("s_mov_b32 exec_hi, 0x00ff00ff")
    A("buffer_store_short v16, v10, s[12:15], s21 offen")
    A("s_cmp_lg_u32 s28, 0")
    A("s_cbranch_scc1 L_final_done")
    A("s_mov_b64 exec, 1")
    A("v_mov_b32 v17, s24")
    A("buffer_store_dword v17, v3, s[8:11], 0 offen sc1")
    A.label("L_final_done")
    A("s_mov_b64 exec, -1")
    stamp(9)
    end()

    A.label("L_ffn")
    A("s_cmp_eq_u32 s5, 31")
    A(f"s_cbranch_scc1 {EXIT}")
    A("s_setprio 0")
    A("s_mul_i32 s26, s4, 7")
    A("s_add_u32 s26, s26, s21")
    A("v_lshrrev_b32 v4, 3, v0")
    A("v_and_b32 v5, 7, v0")
    A("v_and_b32 v6, 2, v4")
    A("v_xor_b32 v5, v5, v6")
    A("v_lshlrev_b32 v5, 4, v5")
    A("v_lshl_add_u32 v4, v4, 10, v5")
    A("v_xor_b32 v5, 64, v4")
    A("s_lshl_b32 s27, s26, 15")
    A("s_lshl_b32 s28, s3, 7")
    A("s_add_u32 s27, s27, s28")
    A("s_lshl_b32 s22, s3, 12")
    A(f"s_add_u32 s22, s22, {DOWN}")
    A("v_lshrrev_b32 v6, 2, v0")
    A("v_and_b32 v7, 9, v6")
    A("v_bfe_u32 v12, v6, 1, 1")
    A("v_lshl_add_u32 v7, v12, 2, v7")
    A("v_bfe_u32 v12, v6, 2, 1")
    A("v_lshl_add_u32 v7, v12, 1, v7")
    A("v_mul_u32_u24 v6, 3584, v7")
    A("v_and_b32 v7, 3, v0")
    A("v_lshl_add_u32 v6, v7, 4, v6")
    A("v_xor_b32 v7, 32, v6")
    A(f"s_mul_i32 s28, s3, {128*3584}")
    A("s_lshl_b32 s29, s26, 6")
    A("s_add_u32 s28, s28, s29")
    A("s_lshl_b32 s23, s3, 13")
    A(f"s_add_u32 s23, s23, {GATE}")
    srd(12, P_WG, 512*3584)
    srd(16, P_WU, 512*3584)
    srd(56, P_WD, 1792*1024)
    A("s_waitcnt vmcnt(0)")
    A("s_barrier")
    stamp(7)
    A("s_cmp_gt_u32 s3, 3")
    A("s_cbranch_scc1 L_f_dn")
    A("s_mov_b32 s29, s28")
    A("s_mov_b32 s21, s23")
    for m in range(2):
        for i in range(8):
            A("s_mov_b32 m0, s21")
            A("s_add_u32 s21, s21, 1024")
            A(f"buffer_load_dwordx4 v{6+(i&1)}, s[{12+4*m}:{15+4*m}], s29 offen nt lds")
            A(f"s_add_u32 s29, s29, {16*3584}")
        if m == 0:
            A("s_mov_b32 s29, s28")
            A("s_add_u32 s21, s23, 32768")
    A.label("L_f_dn")
    A("s_mov_b32 s21, s22")
    for i in range(4):
        A("s_mov_b32 m0, s21")
        A("s_add_u32 s21, s21, 1024")
        A(f"buffer_load_dwordx4 v{4+(i&1)}, s[56:59], s27 offen nt lds")
        A("s_add_u32 s27, s27, 8192")
    stamp(8)
    A("v_bfe_u32 v8, v0, 2, 2")
    A("v_and_b32 v9, 3, v0")
    A("v_lshlrev_b32 v104, 10, v2")
    A("v_lshl_add_u32 v104, v8, 7, v104")
    A("v_lshl_add_u32 v104, v9, 3, v104")
    A("v_lshrrev_b32 v10, 1, v8")
    A("v_and_b32 v11, 1, v2")
    A("v_lshl_add_u32 v12, v11, 1, v10")
    A("v_lshl_add_u32 v104, v12, 5, v104")
    A("v_add_u32 v104, s22, v104")
    A("v_xor_b32 v105, 32, v104")
    A("v_xor_b32 v106, 64, v104")
    A("v_xor_b32 v107, 0x60, v104")
    A("v_and_b32 v13, 1, v8")
    A("v_mul_u32_u24 v108, 1056, v13")
    A("v_lshl_add_u32 v108, v12, 6, v108")
    A("v_lshrrev_b32 v13, 1, v2")
    A("v_lshl_add_u32 v108, v13, 9, v108")
    A("v_lshl_add_u32 v108, v9, 3, v108")
    A("v_add_u32 v108, s23, v108")
    A("v_xor_b32 v109, 32, v108")
    A("v_lshlrev_b32 v110, 8, v13")
    A("v_lshl_add_u32 v110, v8, 6, v110")
    A("v_lshl_add_u32 v110, v11, 5, v110")
    A("v_lshl_add_u32 v110, v9, 3, v110")
    A(f"v_add_u32 v110, {GACC}, v110")
    A("v_lshlrev_b32 v111, 3, v8")
    A("s_lshl_b32 s27, s3, 10")
    A("v_lshl_add_u32 v112, v0, 2, s27")
    for i in range(4): A(f"v_cmp_eq_u32 s[{32+2*i}:{33+2*i}], {i}, v9")
    A("v_lshrrev_b32 v113, 3, v0")
    A(f"v_mul_u32_u24 v113, {DRS}, v113")
    A("v_and_b32 v13, 7, v0")
    A("v_lshl_add_u32 v113, v13, 4, v113")
    A(f"s_mul_i32 s28, s3, {8*DRS}")
    A("s_lshl_b32 s29, s26, 7")
    A("s_add_u32 s28, s28, s29")
    A(f"s_add_u32 s28, s28, {DR}")
    A("s_lshl_b32 s31, s4, 15")
    A(f"s_add_u32 s31, s31, {GL+HR_O}")
    A("s_mov_b32 s23, 0xffff0000")
    A(f"s_mov_b32 s21, {LOG2E | 0x80000000:#x}")
    DF = 88
    GB = 24
    ACC = [4, 116, 120, 124]
    def down_reads():
        for tau in range(4):
            r = DF + 4*tau
            A(f"ds_read_b64_tr_b16 v[{r}:{r+1}], v{104+tau}")
            A(f"ds_read_b64_tr_b16 v[{r+2}:{r+3}], v{104+tau} offset:512")
    def acc_write(base):
        A(f"ds_write2st64_b32 v112, v{ACC[0]}, v{ACC[1]} offset0:{base//256} offset1:{base//256+1}")
        A(f"ds_write2st64_b32 v112, v{ACC[2]}, v{ACC[3]} offset0:{base//256+2} offset1:{base//256+3}")
    def sum4(dst, off):
        for k in range(4):
            A(f"ds_read2st64_b64 v[{8+4*k}:{11+4*k}], v110 offset0:{(off+1024*k)//512} offset1:{(off+1024*k)//512+1}")
    A("s_cmp_gt_u32 s3, 3")
    A("s_cbranch_scc1 L_f_stat")
    A("v_lshlrev_b32 v114, 10, v8")
    A("v_lshl_add_u32 v114, v2, 4, v114")
    A("s_lshl_b32 s27, s3, 8")
    A("s_add_u32 s27, s27, s31")
    for i in range(4): A(f"v_mov_b32 v{8+i}, 0x3f803f80")
    for m in range(2):
        A(f"s_waitcnt vmcnt({12 - 8*m})")
        for ks in range(4):
            for t2 in range(2):
                r = GB + 32*m + 8*ks + 4*t2
                A(f"ds_read_b64_tr_b16 v[{r}:{r+1}], v{108+t2} offset:{m*32768+ks*2048}")
                A(f"ds_read_b64_tr_b16 v[{r+2}:{r+3}], v{108+t2} offset:{m*32768+ks*2048+256}")
    A("s_waitcnt lgkmcnt(0)")
    for ks in range(4):
        for j in range(4):
            m, t2 = j >> 1, j & 1
            r = GB + 32*m + 8*ks + 4*t2
            d = ACC[j]
            A(f"v_mfma_f32_16x16x32_bf16 v[{d}:{d+3}], v[8:11], v[{r}:{r+3}], {'0' if ks == 0 else f'v[{d}:{d+3}]'}")
    acc_write(CSUM)
    A("s_branch L_f_cs")
    A.label("L_f_stat")
    A("v_lshlrev_b32 v114, 4, v0")
    A("s_sub_u32 s29, s3, 4")
    A("s_lshl_b32 s27, s29, 10")
    A("s_add_u32 s27, s27, s31")
    A("s_lshl_b32 s29, s29, 3")
    A("v_mov_b32 v115, s29")
    A.label("L_f_cs")
    A("s_waitcnt vmcnt(0)")
    stamp(9)
    down_reads()
    A("s_waitcnt lgkmcnt(0)")
    A("s_barrier")
    sum4(0, CSUM - GACC)
    A("s_waitcnt lgkmcnt(0)")
    for i in range(4): A(f"v_pk_add_f32 v[{8+2*i}:{9+2*i}], v[{8+2*i}:{9+2*i}], v[{16+2*i}:{17+2*i}]")
    for i in range(2): A(f"v_pk_add_f32 v[{104+2*i}:{105+2*i}], v[{8+2*i}:{9+2*i}], v[{12+2*i}:{13+2*i}]")
    A("s_setprio 3")
    stamp(10)
    A("s_cmp_gt_u32 s3, 3")
    A("s_cbranch_scc1 L_f_stat2")
    spin_head("L_g_poll", "L_g_ok")
    for ks in range(4):
        A(f"buffer_load_dwordx4 v[{8+4*ks}:{11+4*ks}], v114, s[8:11], s27 offen offset:{64*ks} sc1")
    A("s_waitcnt vmcnt(0)")
    max_tree(115, range(8, 24))
    A("v_cmp_eq_u32 vcc, -1, v115")
    A("s_cbranch_vccnz L_g_poll")
    A.label("L_g_ok")
    stamp(11)
    for ks in range(4):
        for j in range(4):
            m, t2 = j >> 1, j & 1
            r = GB + 32*m + 8*ks + 4*t2
            d = ACC[j]
            A(f"v_mfma_f32_16x16x32_bf16 v[{d}:{d+3}], v[{8+4*ks}:{11+4*ks}], v[{r}:{r+3}], {'0' if ks == 0 else f'v[{d}:{d+3}]'}")
    acc_write(GACC)
    A("s_branch L_f_join")
    A.label("L_f_stat2")
    spin_head("L_s_poll", "L_s_ok")
    A("buffer_load_dwordx4 v[8:11], v114, s[8:11], s27 offen sc1")
    A("s_waitcnt vmcnt(0)")
    max_tree(12, range(8, 12))
    A("v_cmp_eq_u32 vcc, -1, v12")
    A("s_cbranch_vccnz L_s_poll")
    A.label("L_s_ok")
    stamp(11)
    for i in range(4):
        A(f"v_lshlrev_b32 v{12+2*i}, 16, v{8+i}")
        A(f"v_and_b32 v{13+2*i}, s23, v{8+i}")
    A("v_pk_add_f32 v[20:21], v[12:13], v[14:15]")
    A("v_pk_mul_f32 v[24:25], v[12:13], v[12:13]")
    A("v_pk_add_f32 v[22:23], v[16:17], v[18:19]")
    A("v_pk_fma_f32 v[24:25], v[14:15], v[14:15], v[24:25]")
    A("v_pk_add_f32 v[20:21], v[20:21], v[22:23]")
    A("v_pk_fma_f32 v[24:25], v[16:17], v[16:17], v[24:25]")
    A("v_add_f32 v20, v20, v21")
    A("v_pk_fma_f32 v[24:25], v[18:19], v[18:19], v[24:25]")
    A("v_add_f32 v21, v24, v25")
    A("v_permlane32_swap_b32 v20, v21")
    A("v_add_f32 v20, v20, v21")
    A("v_mov_b32 v21, v20")
    A("v_permlane16_swap_b32 v20, v21")
    A("v_add_f32 v20, v20, v21")
    rowsum(20)
    A("v_mul_f32 v20, 0x3b000000, v20")
    A("v_mov_b32 v21, v20")
    A("v_permlane32_swap_b32 v20, v21")
    A("v_fma_f32 v21, -v20, v20, v21")
    A("v_max_f32 v21, 0, v21")
    A(f"v_add_f32 v21, {EPS:#x}, v21")
    A("v_rsq_f32 v21, v21")
    A(f"ds_write_b64 v115, v[20:21] offset:{STAT}")
    A.label("L_f_join")
    A("s_waitcnt lgkmcnt(0)")
    A("s_barrier")
    stamp(12)
    sum4(0, 0)
    A(f"ds_read_b64 v[24:25], v111 offset:{STAT}")
    A("s_waitcnt lgkmcnt(0)")
    for i in range(4): A(f"v_pk_add_f32 v[{8+2*i}:{9+2*i}], v[{8+2*i}:{9+2*i}], v[{16+2*i}:{17+2*i}]")
    for i in range(2): A(f"v_pk_add_f32 v[{8+2*i}:{9+2*i}], v[{8+2*i}:{9+2*i}], v[{12+2*i}:{13+2*i}]")
    for i in range(4): A(f"v_fma_f32 v{8+i}, -v24, v{104+i}, v{8+i}")
    for i in range(4): A(f"v_mul_f32 v{8+i}, v25, v{8+i}")
    A("v_cvt_pk_bf16_f32 v12, v8, v9")
    A("v_cvt_pk_bf16_f32 v13, v10, v11")
    A("v_lshlrev_b32 v8, 16, v12")
    A("v_and_b32 v9, s23, v12")
    A("v_mul_f32 v8, s21, v8")
    A("v_mul_f32 v9, s21, v9")
    A("v_exp_f32 v8, v8")
    A("v_exp_f32 v9, v9")
    A("v_lshlrev_b32 v10, 16, v13")
    A("v_and_b32 v11, s23, v13")
    A("v_add_f32 v8, 1.0, v8")
    A("v_add_f32 v9, 1.0, v9")
    A("v_rcp_f32 v8, v8")
    A("v_rcp_f32 v9, v9")
    A("v_cvt_pk_bf16_f32 v12, v8, v9")
    A("v_lshlrev_b32 v8, 16, v12")
    A("v_and_b32 v9, s23, v12")
    A("v_mul_f32 v8, v8, v10")
    A("v_mul_f32 v9, v9, v11")
    A("v_cvt_pk_bf16_f32 v12, v8, v9")
    for i in range(4): A(f"v_cndmask_b32 v{16+i}, 0, v12, s[{32+2*i}:{33+2*i}]")
    for tau in range(4):
        A(f"v_mfma_f32_16x16x32_bf16 v[{24+4*tau}:{27+4*tau}], v[16:19], v[{DF+4*tau}:{DF+4*tau+3}], 0")
    for tau in range(4):
        d = 24 + 4*tau
        A(f"v_pk_add_f32 v[{d}:{d+1}], v[{d}:{d+1}], v[{d+2}:{d+3}]")
        A(f"v_add_f32 v{d}, v{d}, v{d+1}")
        A(f"v_min_u32 v{20+tau}, -2, v{d}")
    A("buffer_store_dwordx4 v[20:23], v113, s[8:11], s28 offen sc1")
    stamp(13)
    if stamps:
        A.label("L_endstamp")
        A("s_mov_b64 exec, -1")
        stamp(15)
        A("s_waitcnt lgkmcnt(0)")
        for i in range(6): A("s_barrier")
        A("v_mov_b32 v8, 0")
        for i in range(16): A(f"v_writelane_b32 v8, s{64+2*i}, {i}")
        A("s_lshl_b32 s27, s2, 4")
        A("s_add_u32 s27, s27, s3")
        A("s_lshl_b32 s27, s27, 6")
        A(f"s_add_u32 s27, s27, {STAMPS}")
        A("v_lshlrev_b32 v9, 2, v0")
        A("s_mov_b64 exec, 0xffff")
        A("buffer_store_dword v8, v9, s[8:11], s27 offen")
    A.label("L_exit")
    A("s_endpgm")
    A.label("L_code_end")
    A.raw('.section .rodata,"a"\n.p2align 6')
    A.raw(f".amdhsa_kernel {KNAME}")
    A.raw("  .amdhsa_next_free_vgpr 128\n  .amdhsa_next_free_sgpr 96\n  .amdhsa_accum_offset 128")
    A.raw("  .amdhsa_group_segment_fixed_size 0\n  .amdhsa_kernarg_size 96\n  .amdhsa_user_sgpr_count 2\n  .amdhsa_user_sgpr_kernarg_segment_ptr 1\n  .amdhsa_system_sgpr_workgroup_id_x 1\n  .amdhsa_float_denorm_mode_32 3")
    A.raw(".end_amdhsa_kernel")
    return A.text()

if __name__ == "__main__":
    out = sys.argv[1] if len(sys.argv) > 1 else "sequential_preLN__sliding_block_cached__glu_gated_glu__decode.s"
    stamps = len(sys.argv) > 2 and sys.argv[2] == "1"
    opts = eval(sys.argv[3]) if len(sys.argv) > 3 else None
    open(out, "w").write(gen(stamps, opts))
```

```python
import sys
from asmlib import Asm

KNAME = "sequential_preLN__sliding_block_cached__glu_gated_glu__decode_kernel"

H2 = 0x3000
QA = 0x10000
QG = 0x20000
GS_O = 0x2000
HL_O = 0x2100
GL = 0x60000
BS_O = 0x6000
HR_O = 0x7000
CR = 0x100000
DR = 0x200000
DRS = 7168
STAMPS = 0x800000
QFLAG = 0
ACNT = 4
KCNT = 8
LFLAG = 12
MAXA = 64
LACC = 256
QL = 2048
CACC = 4096
WL = 8192
KL = 40960
STAT = 64
XN = 2048
QP = 8192
GACC = 12288
CSUM = 16384
GATE = 40960
DOWN = 106496
LDS_BYTES = 139264

SPIN = 1 << 16
LOG2E = 0x3fb8aa3b
SCALE = 0x3db504f3
EPS = 0x3727c5ac

def gen(stamps=False, opts=None):
    o = dict(trigger="q", prefetch=True, wqpf=True, kcnt=1, probev=False)
    if opts: o.update(opts)
    A = Asm()
    EXIT = "L_endstamp" if stamps else "L_exit"
    def stamp(i):
        if stamps: A(f"s_memrealtime s[{64+2*i}:{65+2*i}]")
    def end():
        if stamps: A("s_branch L_endstamp")
        else: A("s_endpgm")
    def srd(d, p, nbytes):
        A(f"s_mov_b64 s[{d}:{d+1}], s[{p}:{p+1}]")
        A(f"s_mov_b32 s{d+2}, {nbytes:#x}")
        A(f"s_mov_b32 s{d+3}, 0x20000")
    P_X, P_K, P_V, P_WQ, P_WO, P_WG, P_WU, P_WD, P_OUT, P_DBG, P_WS = 32, 34, 36, 38, 40, 44, 46, 48, 50, 52, 54
    def spin_head(lbl, out):
        A("s_mov_b32 s30, 0")
        A.label(lbl)
        A("s_add_u32 s30, s30, 1")
        A(f"s_cmp_gt_u32 s30, {SPIN}")
        A(f"s_cbranch_scc1 {out}")
    def max_tree(dst, regs, op="v_max3_u32", op2="v_max_u32"):
        regs = list(regs)
        first = True
        while regs:
            if first:
                if len(regs) >= 3:
                    A(f"{op} v{dst}, v{regs[0]}, v{regs[1]}, v{regs[2]}"); regs = regs[3:]
                elif len(regs) == 2:
                    A(f"{op2} v{dst}, v{regs[0]}, v{regs[1]}"); regs = []
                else:
                    A(f"v_mov_b32 v{dst}, v{regs[0]}"); regs = []
                first = False
            elif len(regs) >= 2:
                A(f"{op} v{dst}, v{dst}, v{regs[0]}, v{regs[1]}"); regs = regs[2:]
            else:
                A(f"{op2} v{dst}, v{dst}, v{regs[0]}"); regs = []
    def tag_issue():
        A(f"s_load_dword s24, s[{P_WS}:{P_WS+1}], 0")
    def tag_fin():
        A("s_waitcnt lgkmcnt(0)")
        A("s_and_b32 s24, s24, -16")
        A("s_add_u32 s24, s24, 16")
    def ctl_base(sd):
        A(f"s_lshl_b32 s{sd}, s4, 14")
        A(f"s_add_u32 s{sd}, s{sd}, {QA}")
    def dual_store(ins, so):
        A(ins)
        A(f"s_add_u32 s{so}, s{so}, {QG}")
        A(ins + " sc1")
    def hello(va):
        A("s_getreg_b32 s25, hwreg(HW_REG_XCC_ID, 0, 4)")
        ctl_base(27)
        A("s_lshl_b32 s30, s5, 3")
        A("s_add_u32 s27, s27, s30")
        A(f"s_add_u32 s27, s27, {HL_O}")
        A(f"v_mov_b32 v{va}, s25")
        tag_fin()
        A(f"v_mov_b32 v{va+1}, s24")
        A("s_mov_b64 exec, 1")
        dual_store(f"buffer_store_dwordx2 v[{va}:{va+1}], v3, s[8:11], s27 offen", 27)
        A("s_mov_b64 exec, -1")
    def lstore(ins):
        l1, l2 = A.newlabel("L_ls"), A.newlabel("L_ls")
        A("s_cmp_lg_u32 s26, 2")
        A(f"s_cbranch_scc1 {l1}")
        A(ins)
        A(f"s_branch {l2}")
        A.label(l1)
        A(ins + " sc1")
        A.label(l2)
    def rowsum(r):
        for k in (8, 4, 2, 1):
            A(f"v_add_f32_dpp v{r}, v{r}, v{r} row_ror:{k} row_mask:0xf bank_mask:0xf")

    hdr = open("sequential_preLN__sliding_block_cached__glu_gated_glu__decode.s.ref").read().split("\n")
    for l in hdr:
        if l.startswith(";") and "@launch" not in l and "Override" not in l and "grid=ceil" not in l: A.raw(l)
        elif not l.startswith(";"): break
    A.raw(f"; @launch grid=(256,1,1) block=(1024,1,1) lds={LDS_BYTES}")
    A.raw('.amdgcn_target "amdgcn-amd-amdhsa--gfx950"')
    A.raw(f".text\n.globl {KNAME}\n.p2align 8\n.type {KNAME},@function\n{KNAME}:")
    A("s_cmp_ge_u32 s2, 256")
    A("s_cbranch_scc1 L_exit")
    A("s_load_dwordx16 s[32:47], s[0:1], 0")
    A("s_load_dwordx8 s[48:55], s[0:1], 64")
    stamp(0)
    A("v_lshrrev_b32 v1, 6, v0")
    A("v_mov_b32 v3, 0")
    A("v_readfirstlane_b32 s3, v1")
    A("v_and_b32 v0, 63, v0")
    A("v_mov_b32 v4, 0")
    A("v_mov_b32 v5, 0")
    A("ds_write_b96 v3, v[4:6]".replace("v[4:6]", "v[4:6]") if False else "ds_write_b64 v3, v[4:5]")
    A("ds_write_b32 v3, v4 offset:8")
    A("s_and_b32 s4, s2, 7")
    A("s_lshr_b32 s5, s2, 3")
    A("v_and_b32 v1, 15, v0")
    A("v_lshrrev_b32 v2, 4, v0")
    A("s_mul_i32 s6, s5, 43")
    A("s_lshr_b32 s6, s6, 8")
    A("s_mul_i32 s7, s6, 6")
    A("s_sub_u32 s7, s5, s7")
    A("s_mul_i32 s28, s7, 11")
    A("s_cmp_eq_u32 s7, 5")
    A("s_cselect_b32 s28, 54, s28")
    A("s_cmp_ge_u32 s7, 4")
    A("s_cselect_b32 s29, 10, 11")
    A("s_lshl_b32 s27, s6, 3")
    A("s_add_u32 s27, s27, s4")
    A("s_lshl_b32 s27, s27, 8")
    A("s_add_u32 s28, s28, s27")
    A("s_cmp_ge_u32 s3, 5")
    A("s_cselect_b32 s27, 5, 1")
    A("s_sub_u32 s27, s3, s27")
    A("s_add_u32 s28, s28, s27")
    A("s_add_u32 s28, s28, 192")
    A("s_lshl_b32 s28, s28, 13")
    A("s_lshl_b32 s31, s27, 13")
    A(f"s_add_u32 s31, s31, {KL}")
    A("s_mov_b32 s10, 0x10000000")
    A("s_mov_b32 s11, 0x20000")
    A("s_mov_b32 s14, 0x4000000")
    A("s_mov_b32 s15, 0x20000")
    A("v_xor_b32 v4, v1, v2")
    A("v_lshlrev_b32 v4, 4, v4")
    A("v_lshl_add_u32 v4, v2, 8, v4")
    A("v_xor_b32 v5, 64, v4")
    A("v_xor_b32 v6, 0x80, v4")
    A("v_xor_b32 v7, 0xc0, v4")
    A("v_lshlrev_b32 v8, 4, v1")
    A("v_lshl_add_u32 v8, v2, 10, v8")
    if stamps:
        for i in range(66, 96, 2): A(f"s_mov_b64 s[{i}:{i+1}], 0")
    A("s_mov_b32 s22, s31")
    A("s_mov_b32 s23, s28")
    A("s_waitcnt lgkmcnt(0)")
    A("s_barrier")
    A(f"s_mov_b64 s[8:9], s[{P_WS}:{P_WS+1}]")
    stamp(1)
    A("s_cmp_ge_u32 s5, 24")
    A("s_cbranch_scc1 L_nonatt")
    A("s_cmp_ge_u32 s3, 5")
    A("s_cbranch_scc1 L_vwave")
    A("s_cmp_eq_u32 s3, 0")
    A("s_cbranch_scc1 L_w0")
    A("s_setprio 2")
    A(f"s_mov_b64 s[12:13], s[{P_K}:{P_K+1}]")
    A.label("L_a_kloop")
    for h in range(2):
        A("s_mov_b32 m0, s22")
        A(f"s_add_u32 s22, s22, {4096 if h == 0 else 28672}")
        for j in range(4):
            A(f"buffer_load_dwordx4 v{4+j}, s[12:15], s23 offen offset:{j*1024} nt lds")
        A(f"s_add_u32 s23, s23, {4096 if h == 0 else 28672}")
    A("s_add_u32 s27, s27, 4")
    A("s_cmp_lt_u32 s27, s29")
    A("s_cbranch_scc1 L_a_kloop")
    A("s_branch L_a_kdone")
    A.label("L_vwave")
    A("s_setprio 1")
    A("s_cmp_ge_u32 s27, s29")
    A(f"s_cbranch_scc1 {EXIT}")
    A(f"s_mov_b64 s[12:13], s[{P_V}:{P_V+1}]")
    A("s_cmp_eq_u32 s3, 14")
    A("s_cbranch_scc1 L_v_hello")
    A.label("L_v_ld")
    A("s_add_u32 s27, s28, 4096")
    VV = 12
    for t in range(8):
        A(f"buffer_load_dwordx4 v[{VV+4*t}:{VV+4*t+3}], v8, s[12:15], {'s28' if t < 4 else 's27'} offen offset:{(t&3)*256} nt")
    A("s_branch L_v_go")
    A.label("L_w0")
    A("s_setprio 3")
    if o["wqpf"]:
        srd(12, P_WQ, 0x400000)
        A("v_lshrrev_b32 v9, 3, v0")
        A("v_and_b32 v10, 7, v0")
        A("v_lshlrev_b32 v10, 7, v10")
        A("v_lshl_add_u32 v9, v9, 13, v10")
        A("s_lshl_b32 s27, s6, 3")
        A("s_add_u32 s27, s27, s7")
        A("s_add_u32 s27, s27, 2")
        A("s_lshl_b32 s27, s27, 17")
        A("s_lshl_b32 s29, s4, 10")
        A("s_add_u32 s27, s27, s29")
        A("buffer_load_dword v10, v9, s[12:15], s27 offen nt")
        A("s_add_u32 s27, s27, 0x10000")
        A("buffer_load_dword v11, v9, s[12:15], s27 offen nt")
    tag_issue()
    A("s_branch L_w0_go")
    A.label("L_nonatt")
    A("s_sub_u32 s21, s5, 24")
    A("s_cmp_gt_u32 s3, 3")
    A("s_cbranch_scc1 L_na_other")
    A("s_setprio 3")
    srd(16, P_X, 0x1000)
    srd(12, P_WQ, 0x400000)
    A("s_lshl_b32 s27, s3, 8")
    A("v_lshl_add_u32 v4, v1, 4, s27")
    A("v_lshl_add_u32 v4, v2, 10, v4")
    A("buffer_load_dwordx4 v[8:11], v4, s[16:19], 0 offen nt")
    A("v_xor_b32 v5, 0x100, v4")
    A("buffer_load_dwordx4 v[12:15], v5, s[16:19], 0 offen nt")
    A("v_xor_b32 v5, 0x200, v4")
    A("buffer_load_dwordx4 v[16:19], v5, s[16:19], 0 offen nt")
    A("v_xor_b32 v5, 0x300, v4")
    A("buffer_load_dwordx4 v[20:23], v5, s[16:19], 0 offen nt")
    tag_issue()
    A("v_lshrrev_b32 v104, 3, v0")
    A("v_and_b32 v105, 7, v0")
    A("v_and_b32 v106, 2, v104")
    A("v_xor_b32 v105, v105, v106")
    A("v_lshlrev_b32 v105, 4, v105")
    A("v_lshl_add_u32 v104, v104, 13, v105")
    A("v_xor_b32 v105, 64, v104")
    A("s_lshl_b32 s27, s3, 20")
    A("s_lshl_b32 s28, s4, 10")
    A("s_add_u32 s27, s27, s28")
    A("s_lshl_b32 s28, s21, 7")
    A("s_add_u32 s27, s27, s28")
    A("s_lshl_b32 s31, s3, 14")
    A(f"s_add_u32 s31, s31, {GATE}")
    A("s_mov_b32 s22, s31")
    A("s_mov_b32 s23, 0")
    A.label("L_qdma")
    for i in range(2):
        A("s_mov_b32 m0, s22")
        A("s_add_u32 s22, s22, 1024")
        A(f"buffer_load_dwordx4 v{104+i}, s[12:15], s27 offen nt lds")
        A("s_add_u32 s27, s27, 0x10000")
    A("s_add_u32 s23, s23, 1")
    A("s_cmp_lt_u32 s23, 8")
    A("s_cbranch_scc1 L_qdma")
    stamp(2)
    A("s_mov_b32 s23, 0xffff0000")
    A("s_waitcnt vmcnt(16)")
    stamp(3)
    XF = 24
    for i in range(16):
        A(f"v_lshlrev_b32 v{XF+2*i}, 16, v{8+i}")
        A(f"v_and_b32 v{XF+2*i+1}, s23, v{8+i}")
    tag_fin()
    for i in range(8): A(f"v_pk_add_f32 v[{56+2*i}:{57+2*i}], v[{XF+2*i}:{XF+2*i+1}], v[{XF+16+2*i}:{XF+17+2*i}]")
    for i in range(4): A(f"v_pk_add_f32 v[{56+2*i}:{57+2*i}], v[{56+2*i}:{57+2*i}], v[{64+2*i}:{65+2*i}]")
    for i in range(2): A(f"v_pk_add_f32 v[{56+2*i}:{57+2*i}], v[{56+2*i}:{57+2*i}], v[{60+2*i}:{61+2*i}]")
    A("v_pk_add_f32 v[56:57], v[56:57], v[58:59]")
    A("v_add_f32 v56, v56, v57")
    rowsum(56)
    A("v_mul_f32 v72, 0x3b000000, v56")
    for i in range(16):
        t = 56 + 2*(i & 3)
        A(f"v_pk_add_f32 v[{t}:{t+1}], v[{XF+2*i}:{XF+2*i+1}], v[72:73] op_sel_hi:[1,0] neg_lo:[0,1] neg_hi:[0,1]")
        a = 74 + 2*(i & 1)
        if i < 2: A(f"v_pk_mul_f32 v[{a}:{a+1}], v[{t}:{t+1}], v[{t}:{t+1}]")
        else: A(f"v_pk_fma_f32 v[{a}:{a+1}], v[{t}:{t+1}], v[{t}:{t+1}], v[{a}:{a+1}]")
    A("v_pk_add_f32 v[74:75], v[74:75], v[76:77]")
    A("v_add_f32 v74, v74, v75")
    rowsum(74)
    A("v_mul_f32 v74, 0x3b000000, v74")
    A("v_cvt_pk_bf16_f32 v75, v72, v74")
    A("v_lshlrev_b32 v72, 16, v75")
    A("v_and_b32 v74, s23, v75")
    A(f"v_add_f32 v74, {EPS:#x}, v74")
    A("v_cvt_pk_bf16_f32 v74, v74, v74")
    A("v_and_b32 v74, s23, v74")
    A("v_sqrt_f32 v74, v74")
    A("v_cvt_pk_bf16_f32 v74, v74, v74")
    A("v_and_b32 v74, s23, v74")
    A("v_rcp_f32 v74, v74")
    for i in range(4):
        A(f"v_pk_add_f32 v[{XF+2*i}:{XF+2*i+1}], v[{XF+2*i}:{XF+2*i+1}], v[72:73] op_sel_hi:[1,0] neg_lo:[0,1] neg_hi:[0,1]")
    for i in range(4): A(f"v_cvt_pk_bf16_f32 v{8+i}, v{XF+2*i}, v{XF+2*i+1}")
    for i in range(4):
        A(f"v_lshlrev_b32 v{XF+2*i}, 16, v{8+i}")
        A(f"v_and_b32 v{XF+2*i+1}, s23, v{8+i}")
    for i in range(4):
        A(f"v_pk_mul_f32 v[{XF+2*i}:{XF+2*i+1}], v[{XF+2*i}:{XF+2*i+1}], v[74:75] op_sel_hi:[1,0]")
    for i in range(4): A(f"v_cvt_pk_bf16_f32 v{8+i}, v{XF+2*i}, v{XF+2*i+1}")
    A("s_lshl_b32 s27, s3, 10")
    A("v_lshl_add_u32 v7, v0, 4, s27")
    A(f"ds_write_b128 v7, v[8:11] offset:{XN}")
    A("v_bfe_u32 v12, v0, 2, 2")
    A("v_lshl_add_u32 v5, v12, 8, s27")
    A("v_lshl_add_u32 v5, v2, 4, v5")
    XA = 72
    for ks in range(4): A(f"ds_read_b128 v[{XA+4*ks}:{XA+4*ks+3}], v5 offset:{XN+64*ks}")
    A("v_and_b32 v13, 3, v0")
    A("v_lshlrev_b32 v104, 10, v2")
    A("v_lshl_add_u32 v104, v12, 7, v104")
    A("v_lshl_add_u32 v104, v13, 3, v104")
    A("v_lshrrev_b32 v12, 1, v12")
    A("v_and_b32 v14, 1, v2")
    A("v_lshl_add_u32 v12, v14, 1, v12")
    A("v_lshl_add_u32 v104, v12, 5, v104")
    A("v_add_u32 v104, s31, v104")
    A("v_xor_b32 v105, 32, v104")
    A("v_xor_b32 v106, 64, v104")
    A("v_xor_b32 v107, 0x60, v104")
    ctl_base(27)
    A("s_lshl_b32 s28, s21, 8")
    A("s_add_u32 s27, s27, s28")
    A("v_lshlrev_b32 v5, 4, v1")
    A("v_lshl_add_u32 v5, v2, 11, v5")
    stamp(4)
    DQ = 56
    def q_reads(ks):
        A(f"s_waitcnt vmcnt({12-4*ks})")
        for tau in range(4):
            r = 8 + 16*(ks & 1) + 4*tau
            A(f"ds_read_b64_tr_b16 v[{r}:{r+1}], v{104+tau} offset:{ks*4096}")
            A(f"ds_read_b64_tr_b16 v[{r+2}:{r+3}], v{104+tau} offset:{ks*4096+512}")
    q_reads(0)
    for ks in range(4):
        A("s_waitcnt lgkmcnt(0)")
        if ks < 3: q_reads(ks + 1)
        for tau in range(4):
            r = 8 + 16*(ks & 1) + 4*tau
            d = DQ + 4*tau
            A(f"v_mfma_f32_16x16x32_bf16 v[{d}:{d+3}], v[{XA+4*ks}:{XA+4*ks+3}], v[{r}:{r+3}], {'0' if ks == 0 else f'v[{d}:{d+3}]'}")
    for tau in range(1, 4): A(f"v_mov_b32 v{DQ+tau}, v{DQ+4*tau}")
    A(f"ds_write_b128 v7, v[{DQ}:{DQ+3}] offset:{QP}")
    A("v_mov_b32 v8, 1")
    A("s_mov_b64 exec, 1")
    A(f"ds_add_u32 v3, v8 offset:{ACNT}")
    A("s_mov_b64 exec, -1")
    stamp(5)
    A("s_cmp_lg_u32 s3, 0")
    A("s_cbranch_scc1 L_ffn")
    spin_head("L_qp_spin", "L_qp_ok")
    A(f"ds_read_b32 v8, v3 offset:{ACNT}")
    for k in range(1, 4): A(f"ds_read_b128 v[{8+4*k}:{11+4*k}], v7 offset:{QP+1024*k}")
    A("s_waitcnt lgkmcnt(0)")
    A("v_readfirstlane_b32 s28, v8")
    A("s_cmp_lt_u32 s28, 4")
    A("s_cbranch_scc1 L_qp_spin")
    A.label("L_qp_ok")
    for i in range(2):
        A(f"v_pk_add_f32 v[{DQ+2*i}:{DQ+2*i+1}], v[{DQ+2*i}:{DQ+2*i+1}], v[{12+2*i}:{13+2*i}]")
        A(f"v_pk_add_f32 v[{16+2*i}:{17+2*i}], v[{16+2*i}:{17+2*i}], v[{20+2*i}:{21+2*i}]")
    for i in range(2):
        A(f"v_pk_add_f32 v[{DQ+2*i}:{DQ+2*i+1}], v[{DQ+2*i}:{DQ+2*i+1}], v[{16+2*i}:{17+2*i}]")
    A(f"v_cvt_pk_bf16_f32 v8, v{DQ}, v{DQ+1}")
    A(f"v_cvt_pk_bf16_f32 v10, v{DQ+2}, v{DQ+3}")
    A("v_mov_b32 v9, s24")
    A("v_mov_b32 v11, s24")
    dual_store("buffer_store_dwordx4 v[8:11], v5, s[8:11], s27 offen", 27)
    stamp(6)
    A("s_branch L_ffn")

    A.label("L_v_hello")
    A("s_setprio 3")
    tag_issue()
    hello(10)
    A("s_setprio 1")
    A("s_branch L_v_ld")

    A.label("L_na_other")
    A("s_cmp_lt_u32 s3, 8")
    A("s_cbranch_scc1 L_ffn")
    A("v_lshlrev_b32 v5, 4, v0")
    for i in range(4): A(f"v_mov_b32 v{8+i}, -1")
    A("s_cmp_eq_u32 s3, 8")
    A("s_cbranch_scc1 L_clr_gl")
    A("s_cmp_eq_u32 s3, 9")
    A("s_cbranch_scc1 L_clr_cd")
    if o["prefetch"]:
        A("s_cmp_eq_u32 s3, 14")
        A("s_cbranch_scc1 L_pref")
    A("s_cmp_eq_u32 s3, 15")
    A("s_cbranch_scc1 L_na_w15")
    A("s_endpgm")
    A.label("L_clr_gl")
    A("s_setprio 3")
    tag_issue()
    A("s_lshl_b32 s28, s4, 3")
    A("s_add_u32 s28, s28, s21")
    A("s_lshl_b32 s28, s28, 12")
    A(f"s_add_u32 s28, s28, {GL}")
    for j in range(4): A(f"buffer_store_dwordx4 v[8:11], v5, s[8:11], s28 offen offset:{1024*j} sc1")
    A("v_lshlrev_b32 v6, 6, v0")
    A("s_waitcnt vmcnt(0)")
    stamp(5)
    hello(12)
    A("buffer_load_dword v14, v6, s[8:11], s28 offen sc1")
    end()
    A.label("L_clr_cd")
    tag_issue()
    spin_head("L_cd_spin", "L_cd_go")
    A("s_sleep 8")
    A(f"ds_read_b32 v12, v3 offset:{ACNT}")
    A("s_waitcnt lgkmcnt(0)")
    A("v_readfirstlane_b32 s28, v12")
    A("s_cmp_lt_u32 s28, 4")
    A("s_cbranch_scc1 L_cd_spin")
    A.label("L_cd_go")
    A("s_lshl_b32 s27, s21, 4")
    A("s_add_u32 s27, s27, s4")
    A("s_lshl_b32 s27, s27, 10")
    A(f"s_add_u32 s27, s27, {CR}")
    A("buffer_store_dwordx4 v[8:11], v5, s[8:11], s27 offen sc1")
    A("s_add_u32 s27, s27, 8192")
    A("buffer_store_dwordx4 v[8:11], v5, s[8:11], s27 offen sc1")
    A("s_cmp_eq_u32 s5, 31")
    A("s_cbranch_scc1 L_clr_done")
    A("s_mul_i32 s27, s4, 7")
    A("s_add_u32 s27, s27, s21")
    A("s_lshl_b32 s27, s27, 7")
    A(f"s_add_u32 s27, s27, {DR}")
    A("v_lshrrev_b32 v7, 3, v0")
    A(f"v_mul_u32_u24 v7, {DRS}, v7")
    A("v_and_b32 v12, 7, v0")
    A("v_lshl_add_u32 v7, v12, 4, v7")
    for w in range(8):
        A("buffer_store_dwordx4 v[8:11], v7, s[8:11], s27 offen sc1")
        if w < 7: A(f"s_add_u32 s27, s27, {8*DRS}")
    A.label("L_clr_done")
    tag_fin()
    A("v_mov_b32 v12, s24")
    A("s_lshl_b32 s27, s4, 3")
    A("s_add_u32 s27, s27, s21")
    A("s_lshl_b32 s27, s27, 2")
    A(f"s_add_u32 s27, s27, {H2}")
    A("s_waitcnt vmcnt(0)")
    stamp(5)
    A("s_mov_b64 exec, 1")
    A("buffer_store_dword v12, v3, s[8:11], s27 offen sc1")
    A("s_mov_b64 exec, -1")
    end()
    A.label("L_na_w15")
    tag_issue()
    ctl_base(29)
    A("s_getreg_b32 s25, hwreg(HW_REG_XCC_ID, 0, 4)")
    A("v_lshrrev_b32 v6, 5, v0")
    A(f"v_mul_u32_u24 v6, {QG}, v6")
    A("s_cmp_eq_u32 s5, 31")
    A("s_cbranch_scc0 L_h_ffn")
    A("v_lshlrev_b32 v7, 7, v0")
    A("buffer_load_dword v14, v7, s[8:11], s29 offen sc1")
    A(f"buffer_load_dword v15, v3, s[8:11], s29 offen offset:0 sc1".replace("v3, s[8:11], s29 offen offset:0", "v5, s[8:11], s29 offen offset:0") if False else "v_add_u32 v7, 0x2000, v5")
    A("buffer_load_dword v15, v7, s[8:11], s29 offen sc1")
    A("v_and_b32 v7, 31, v0")
    A("v_lshl_add_u32 v7, v7, 3, v6")
    A(f"v_add_u32 v7, {HL_O}, v7")
    tag_fin()
    spin_head("L_h_poll", "L_h_ok")
    A("buffer_load_dwordx2 v[14:15], v7, s[8:11], s29 offen sc1")
    A("s_waitcnt vmcnt(0)")
    A("v_cmp_eq_u32 vcc, s24, v15")
    A("s_or_b32 s27, vcc_lo, vcc_hi")
    A("s_cmp_lg_u32 s27, -1")
    A("s_cbranch_scc1 L_h_poll")
    A.label("L_h_ok")
    stamp(3)
    A("v_cmp_ne_u32 s[16:17], s25, v14")
    A("s_and_b64 s[16:17], s[16:17], vcc")
    A("s_cselect_b32 s26, 1, 2")
    A("v_mov_b32 v12, s26")
    A("v_mov_b32 v13, s24")
    A(f"s_add_u32 s29, s29, {GS_O}")
    A("s_mov_b64 exec, 1")
    dual_store("buffer_store_dwordx2 v[12:13], v3, s[8:11], s29 offen", 29)
    A("s_mov_b64 exec, -1")
    end()
    A.label("L_h_ffn")
    A(f"s_add_u32 s29, s29, {GS_O}")
    tag_fin()
    spin_head("L_gs_poll", "L_gs_ok")
    A("buffer_load_dwordx2 v[14:15], v6, s[8:11], s29 offen sc1")
    A("s_waitcnt vmcnt(0)")
    A("v_cmp_eq_u32 vcc, s24, v15")
    A("s_cbranch_vccz L_gs_poll")
    A.label("L_gs_ok")
    stamp(3)
    if o["trigger"] == "stats":
        A("s_lshl_b32 s29, s4, 15")
        A(f"s_add_u32 s29, s29, {GL+BS_O}")
        spin_head("L_t_poll", "L_t_ok")
        A("buffer_load_dwordx4 v[14:17], v5, s[8:11], s29 offen sc1")
        A("s_waitcnt vmcnt(0)")
        A("v_min_u32 v14, v14, v16")
        A("v_cmp_ne_u32 vcc, -1, v14")
        A("s_cbranch_vccz L_t_poll")
        A.label("L_t_ok")
        stamp(4)
    A("v_mov_b32 v12, 1")
    A(f"ds_write_b32 v3, v12 offset:{QFLAG}")
    end()
    if o["prefetch"]:
        A.label("L_pref")
        A("s_getpc_b64 s[56:57]")
        A.label("L_pc")
        A(f"s_sub_u32 s56, s56, L_pc-{KNAME}")
        A("s_subb_u32 s57, s57, 0")
        A("v_lshlrev_b32 v4, 7, v0")
        A(f"s_mov_b32 s27, L_code_end-{KNAME}-4")
        for i in range(2):
            A(f"v_add_u32 v5, {8192*i}, v4")
            A("v_min_u32 v5, s27, v5")
            A(f"global_load_dword v{8+i}, v5, s[56:57]")
        A("s_endpgm")

    A.label("L_v_go")
    stamp(2)
    A("v_lshl_add_u32 v5, v0, 4, s31")
    A("v_lshl_add_u32 v6, v0, 2, s31")
    A("s_mov_b32 s16, 0x05040100")
    A("s_mov_b32 s17, 0x07060302")
    if o["probev"]:
        A("s_waitcnt vmcnt(0)")
        stamp(5)
    A("s_barrier")
    stamp(3)
    PF = 8
    BE = 44
    DE = 76
    A(f"ds_read_b128 v[{PF}:{PF+3}], v5")
    for i in range(3):
        A(f"s_waitcnt vmcnt({6-2*i})")
        for e in range(8):
            A(f"v_perm_b32 v{BE+4*e+i}, v{VV+4*(2*i+1)+(e>>1)}, v{VV+4*(2*i)+(e>>1)}, s{16+(e&1)}")
    A("s_waitcnt vmcnt(0) lgkmcnt(0)")
    stamp(4)
    A("s_setprio 3")
    def perm3(e): A(f"v_perm_b32 v{BE+4*e+3}, v{VV+28+(e>>1)}, v{VV+24+(e>>1)}, s{16+(e&1)}")
    def pv(e): A(f"v_mfma_f32_16x16x32_bf16 v[{DE+4*e}:{DE+4*e+3}], v[{PF}:{PF+3}], v[{BE+4*e}:{BE+4*e+3}], 0")
    perm3(0); perm3(1); perm3(2)
    for e in range(8):
        pv(e)
        if e + 3 < 8: perm3(e + 3)
    for ep in range(4):
        A(f"ds_write2st64_b32 v6, v{DE+8*ep}, v{DE+8*ep+4} offset0:{4+2*ep} offset1:{5+2*ep}")
    end()

    A.label("L_a_kdone")
    A("v_mov_b32 v109, 1")
    A("s_mov_b64 exec, 1")
    A(f"ds_add_u32 v3, v109 offset:{KCNT}")
    A("s_mov_b64 exec, -1")
    stamp(2)
    QF = 8
    KF = 24
    SC = 56
    T0 = 80
    ONES = 96
    LS = 100
    A("s_sub_u32 s29, s29, s3")
    A("s_sub_u32 s19, s3, 1")
    A("v_xor_b32 v4, v1, v2")
    A("v_lshlrev_b32 v4, 4, v4")
    A("v_lshl_add_u32 v4, v1, 8, v4")
    A("v_add_u32 v4, s31, v4")
    A("v_xor_b32 v5, 64, v4")
    A("v_xor_b32 v6, 0x80, v4")
    A("v_xor_b32 v7, 0xc0, v4")
    A("v_lshrrev_b32 v104, 2, v1")
    A("v_lshlrev_b32 v105, 8, v104")
    A("v_lshl_add_u32 v105, v2, 4, v105")
    A("v_lshlrev_b32 v104, 4, v104")
    A("s_lshl_b32 s27, s19, 2")
    A("v_add_u32 v108, s27, v104")
    A("v_lshl_add_u32 v106, v0, 4, s31")
    A("s_lshl_b32 s27, s19, 8")
    A("v_lshl_add_u32 v107, v0, 2, s27")
    for i in range(4): A(f"v_mov_b32 v{ONES+i}, 0x3f803f80")
    A("s_mov_b32 s16, 0xffff0000")
    A(f"s_mov_b32 s17, {SCALE:#x}")
    A(f"s_mov_b32 s18, {LOG2E:#x}")
    spin_head("L_a_qspin", "L_a_qok")
    A(f"ds_read_b32 v110, v3 offset:{QFLAG}")
    A("s_waitcnt lgkmcnt(0)")
    A("v_readfirstlane_b32 s27, v110")
    A("s_cmp_lg_u32 s27, 0")
    A("s_cbranch_scc1 L_a_qok")
    A("s_sleep 2")
    A("s_branch L_a_qspin")
    A.label("L_a_qok")
    stamp(3)
    for d in range(4): A(f"ds_read_b128 v[{QF+4*d}:{QF+4*d+3}], v105 offset:{QL+64*d}")
    A("s_waitcnt vmcnt(0)")
    stamp(4)
    def qk_unit(u):
        off = (u & 1) * 32768
        for tau in range(2):
            for d in range(4):
                r = KF + 16*tau + 4*d
                A(f"ds_read_b128 v[{r}:{r+3}], v{4+d} offset:{off + tau*4096}")
        A("s_waitcnt lgkmcnt(0)")
        for d in range(4):
            for tau in range(2):
                r = KF + 16*tau + 4*d
                s = SC + 8*u + 4*tau
                A(f"v_mfma_f32_16x16x32_bf16 v[{s}:{s+3}], v[{r}:{r+3}], v[{QF+4*d}:{QF+4*d+3}], {'0' if d == 0 else f'v[{s}:{s+3}]'}")
    def round_unit(u):
        s = SC + 8*u
        for i in range(4): A(f"v_cvt_pk_bf16_f32 v{T0+i}, v{s+2*i}, v{s+2*i+1}")
        for i in range(4):
            A(f"v_lshlrev_b32 v{s+2*i}, 16, v{T0+i}")
            A(f"v_and_b32 v{s+2*i+1}, s16, v{T0+i}")
        for i in range(8): A(f"v_mul_f32 v{s+i}, s17, v{s+i}")
        for i in range(4): A(f"v_cvt_pk_bf16_f32 v{T0+i}, v{s+2*i}, v{s+2*i+1}")
        for i in range(4):
            A(f"v_lshlrev_b32 v{s+2*i}, 16, v{T0+i}")
            A(f"v_and_b32 v{s+2*i+1}, s16, v{T0+i}")
    qk_unit(0)
    qk_unit(1)
    round_unit(0)
    round_unit(1)
    max_tree(110, range(SC, SC+16), "v_max3_f32", "v_max_f32")
    A("s_cmp_le_u32 s29, 7")
    A("s_cbranch_scc1 L_a_no3a")
    for d in range(4): A(f"v_add_u32 v{4+d}, 0x10000, v{4+d}")
    qk_unit(2)
    round_unit(2)
    for i in range(4): A(f"v_max3_f32 v110, v110, v{SC+16+2*i}, v{SC+17+2*i}")
    A.label("L_a_no3a")
    A("v_mov_b32 v111, v110")
    A("v_permlane32_swap_b32 v110, v111")
    A("v_max_f32 v110, v110, v111")
    A("v_mov_b32 v111, v110")
    A("v_permlane16_swap_b32 v110, v111")
    A("v_max_f32 v110, v110, v111")
    A(f"ds_write_b32 v108, v110 offset:{MAXA}")
    A("s_mov_b64 exec, 1")
    A(f"ds_add_u32 v3, v109 offset:{ACNT}")
    A("s_mov_b64 exec, -1")
    spin_head("L_a_mspin", "L_a_mok")
    A(f"ds_read_b32 v111, v3 offset:{ACNT}")
    A(f"ds_read_b128 v[112:115], v104 offset:{MAXA}")
    A("s_waitcnt lgkmcnt(0)")
    A("v_readfirstlane_b32 s27, v111")
    A("s_cmp_lt_u32 s27, 4")
    A("s_cbranch_scc1 L_a_mspin")
    A.label("L_a_mok")
    A("v_max3_f32 v110, v112, v113, v114")
    A("v_max_f32 v110, v110, v115")
    def p_unit(u):
        s = SC + 8*u
        for i in range(8): A(f"v_sub_f32 v{s+i}, v{s+i}, v110")
        for i in range(8): A(f"v_mul_f32 v{s+i}, s18, v{s+i}")
        for i in range(8): A(f"v_exp_f32 v{s+i}, v{s+i}")
        t = T0 + 4*u
        for i in range(4): A(f"v_cvt_pk_bf16_f32 v{t+i}, v{s+2*i}, v{s+2*i+1}")
        if u == 2: A("v_add_u32 v106, 0x10000, v106")
        A(f"ds_write_b128 v106, v[{t}:{t+3}] offset:{(u&1)*32768}")
        A(f"v_mfma_f32_16x16x32_bf16 v[{LS}:{LS+3}], v[{t}:{t+3}], v[{ONES}:{ONES+3}], {'0' if u == 0 else f'v[{LS}:{LS+3}]'}")
    p_unit(0)
    p_unit(1)
    A("s_cmp_le_u32 s29, 7")
    A("s_cbranch_scc1 L_a_no3b")
    p_unit(2)
    A.label("L_a_no3b")
    A("s_nop 7")
    A(f"ds_write_b32 v107, v{LS} offset:{LACC}")
    A("s_lshl_b32 s20, s6, 2")
    A("s_add_u32 s20, s20, s7")
    A("s_lshr_b32 s21, s20, 1")
    A("s_and_b32 s20, s20, 1")
    srd(12, P_WO, 0x400000)
    A("v_lshrrev_b32 v4, 3, v0")
    A("v_and_b32 v5, 7, v0")
    A("v_lshlrev_b32 v5, 4, v5")
    A("v_lshl_add_u32 v4, v4, 10, v5")
    A("v_xor_b32 v5, 32, v4")
    A("v_xor_b32 v6, 64, v4")
    A("v_xor_b32 v7, 0x60, v4")
    A("s_lshl_b32 s27, s4, 1")
    A("s_add_u32 s27, s27, s20")
    A("s_lshl_b32 s27, s27, 2")
    A("s_add_u32 s27, s27, s19")
    A("s_lshl_b32 s27, s27, 16")
    A("s_lshl_b32 s22, s21, 7")
    A("s_add_u32 s27, s27, s22")
    A("s_lshl_b32 s22, s19, 13")
    A(f"s_add_u32 s22, s22, {WL}")
    A("s_lshl_b32 s23, s19, 9")
    A(f"s_add_u32 s23, s23, {KL+1024}")
    A("v_lshl_add_u32 v108, v0, 2, s23")
    A("v_add_u32 v109, 0x10000, v108")
    A("s_lshl_b32 s31, s4, 15")
    A(f"s_add_u32 s31, s31, {GL}")
    A("s_lshl_b32 s23, s5, 10")
    A("s_add_u32 s23, s23, s31")
    A("s_waitcnt lgkmcnt(0)")
    stamp(5)
    A("s_barrier")
    stamp(6)
    A("s_cmp_ge_u32 s7, 4")
    A("s_cbranch_scc1 L_a_nowo")
    A("s_setprio 0")
    for i in range(8):
        A("s_mov_b32 m0, s22")
        A("s_add_u32 s22, s22, 1024")
        A(f"buffer_load_dwordx4 v{4 + (i&1) + 2*((i>>2)&1)}, s[12:15], s27 offen nt lds")
        A("s_add_u32 s27, s27, 8192")
    stamp(7)
    A("s_lshr_b32 s25, s19, 1")
    A("s_and_b32 s22, s19, 1")
    A("v_bfe_u32 v8, v0, 2, 2")
    A("v_and_b32 v9, 3, v0")
    A("v_lshlrev_b32 v4, 12, v2")
    A("v_lshrrev_b32 v10, 1, v8")
    A("v_mul_u32_u24 v11, 1056, v10")
    A("v_add_u32 v4, v4, v11")
    A("v_and_b32 v10, 1, v8")
    A("v_lshl_add_u32 v4, v10, 7, v4")
    A("v_lshl_add_u32 v4, v9, 3, v4")
    A("v_and_b32 v10, 1, v2")
    A("v_lshl_add_u32 v4, v10, 6, v4")
    A("s_lshl_b32 s27, s25, 14")
    A(f"s_add_u32 s27, s27, {WL}")
    A("v_add_u32 v4, s27, v4")
    A("v_xor_b32 v5, 32, v4")
    A("v_xor_b32 v6, 64, v4")
    A("v_xor_b32 v7, 0x60, v4")
    A("v_mul_u32_u24 v8, 6, v8")
    A("v_min_u32 v9, 2, v9")
    A("v_add_u32 v8, v8, v9")
    A("v_lshlrev_b32 v8, 10, v8")
    A("v_lshl_add_u32 v104, v2, 4, v8")
    A("s_lshl_b32 s27, s20, 1")
    A("s_add_u32 s27, s27, s25")
    A("s_lshl_b32 s27, s27, 6")
    A("s_add_u32 s27, s27, s31")
    A("s_mul_i32 s28, s22, 3072")
    A("s_add_u32 s28, s28, s27")
    A(f"s_add_u32 s29, s27, {BS_O}")
    A("s_lshl_b32 s27, s22, 5")
    A("v_lshl_add_u32 v105, v2, 8, s27")
    A("v_xor_b32 v106, 32, v105")
    A("s_lshl_b32 s27, s19, 10")
    A("v_lshl_add_u32 v110, v0, 4, s27")
    A.label("L_a_nowo")
    A(f"ds_read_b32 v32, v3 offset:{LFLAG}")
    A("s_setprio 3")
    A("s_waitcnt lgkmcnt(0)")
    A("v_readfirstlane_b32 s26, v32")
    A("v_mov_b32 v32, 0")
    A("v_mov_b32 v33, 0")
    A("s_barrier")
    for u in range(8):
        A(f"ds_read2st64_b32 v[{12+2*u}:{13+2*u}], v108 offset0:{32*u} offset1:{32*u+1}")
    for u in range(2):
        A(f"ds_read2st64_b32 v[{28+2*u}:{29+2*u}], v109 offset0:{32*u} offset1:{32*u+1}")
    A("s_cmp_ge_u32 s7, 4")
    A("s_cbranch_scc1 L_a_o10")
    A("ds_read2st64_b32 v[32:33], v109 offset0:64 offset1:65")
    A.label("L_a_o10")
    A("s_waitcnt lgkmcnt(0)")
    for i in range(5): A(f"v_pk_add_f32 v[{12+2*i}:{13+2*i}], v[{12+2*i}:{13+2*i}], v[{24+2*i}:{25+2*i}]")
    for i in range(3): A(f"v_pk_add_f32 v[{12+2*i}:{13+2*i}], v[{12+2*i}:{13+2*i}], v[{18+2*i}:{19+2*i}]")
    A("v_pk_add_f32 v[12:13], v[12:13], v[14:15]")
    A("v_pk_add_f32 v[12:13], v[12:13], v[16:17]")
    A("v_cvt_pk_bf16_f32 v12, v12, v13")
    A("v_min_u32 v12, -2, v12")
    lstore("buffer_store_dword v12, v107, s[8:11], s23 offen")
    stamp(8)
    A("s_cmp_ge_u32 s7, 4")
    A(f"s_cbranch_scc1 {EXIT}")
    A("s_waitcnt vmcnt(1)")
    stamp(9)
    A("s_barrier")
    AF = 8
    ST = 24
    BF = 36
    DW = 112
    def wo_poll():
        for ks in range(4):
            A(f"buffer_load_dwordx4 v[{AF+4*ks}:{AF+4*ks+3}], v104, s[8:11], s28 offen offset:{256*ks} sc1")
        A(f"buffer_load_dwordx4 v[{ST}:{ST+3}], v105, s[8:11], s29 offen sc1")
        A(f"buffer_load_dwordx2 v[{ST+4}:{ST+5}], v105, s[8:11], s29 offen offset:16 sc1")
        A(f"buffer_load_dwordx4 v[{ST+8}:{ST+11}], v106, s[8:11], s29 offen sc1")
        A(f"buffer_load_dwordx2 v[{ST+6}:{ST+7}], v106, s[8:11], s29 offen offset:16 sc1")
    wo_poll()
    for ks in range(4):
        for tau in range(4):
            r = BF + 16*ks + 4*tau
            A(f"ds_read_b64_tr_b16 v[{r}:{r+1}], v{4+tau} offset:{ks*256}")
            A(f"ds_read_b64_tr_b16 v[{r+2}:{r+3}], v{4+tau} offset:{ks*256+2048}")
    A("s_mov_b32 s30, 0")
    A("s_branch L_wo_chk")
    A.label("L_wo_poll")
    A("s_add_u32 s30, s30, 1")
    A(f"s_cmp_gt_u32 s30, {SPIN}")
    A("s_cbranch_scc1 L_wo_go")
    wo_poll()
    A.label("L_wo_chk")
    A("s_waitcnt vmcnt(0)")
    max_tree(108, range(AF, AF+14))
    max_tree(109, range(AF+14, AF+28))
    A("v_max_u32 v108, v108, v109")
    A("v_cmp_eq_u32 vcc, -1, v108")
    A("s_cbranch_vccnz L_wo_poll")
    A.label("L_wo_go")
    A("s_waitcnt lgkmcnt(0)")
    stamp(10)
    mf = []
    for ks in range(4):
        for tau in range(4):
            r = BF + 16*ks + 4*tau
            d = DW + 4*tau
            mf.append(f"v_mfma_f32_16x16x32_bf16 v[{d}:{d+3}], v[{AF+4*ks}:{AF+4*ks+3}], v[{r}:{r+3}], {'0' if ks == 0 else f'v[{d}:{d+3}]'}")
    va = []
    va.append(f"v_max3_f32 v108, v{ST}, v{ST+2}, v{ST+4}")
    va.append(f"v_max3_f32 v109, v{ST+6}, v{ST+8}, v{ST+10}")
    va.append("v_max_f32 v108, v108, v109")
    for i in range(6): va.append(f"v_sub_f32 v{ST+2*i}, v{ST+2*i}, v108")
    for i in range(6): va.append(f"v_mul_f32 v{ST+2*i}, s18, v{ST+2*i}")
    for i in range(6): va.append(f"v_exp_f32 v{ST+2*i}, v{ST+2*i}")
    va.append(f"v_mul_f32 v109, v{ST}, v{ST+1}")
    for i in range(1, 6): va.append(f"v_fmac_f32 v109, v{ST+2*i}, v{ST+2*i+1}")
    va.append("v_rcp_f32 v109, v109")
    for i in range(3): va.append(f"v_mul_f32 v{ST+2*i}, v{ST+2*i}, v109")
    for i in range(16):
        A(mf[i])
        for k in range(2):
            if va: A(va.pop(0))
    while va: A(va.pop(0))
    for tau in range(4):
        d = DW + 4*tau
        A(f"v_mul_f32 v{100+tau}, v{ST}, v{d}")
        A(f"v_fmac_f32 v{100+tau}, v{ST+2}, v{d+1}")
        A(f"v_fmac_f32 v{100+tau}, v{ST+4}, v{d+2}")
    A(f"ds_write_b128 v110, v[100:103] offset:{CACC}")
    end()

    A.label("L_w0_go")
    A("v_lshlrev_b32 v5, 4, v0")
    A("v_add_u32 v7, 0x1000, v5")
    A("v_lshlrev_b32 v6, 2, v0")
    ctl_base(27)
    A("s_lshl_b32 s29, s6, 11")
    A("v_add_u32 v8, s29, v5")
    A(f"v_mov_b32 v47, {GS_O}")
    A("v_lshlrev_b32 v44, 1, v1")
    A("v_lshl_add_u32 v44, v2, 7, v44")
    A("s_lshl_b32 s31, s4, 15")
    A(f"s_add_u32 s31, s31, {GL}")
    A("s_mov_b32 s23, 0xffff0000")
    A("s_lshl_b32 s17, s6, 2")
    A("s_add_u32 s17, s17, s7")
    A("s_and_b32 s20, s17, 1")
    A("s_lshr_b32 s21, s17, 1")
    srd(12, P_X, 0x1000)
    A("s_lshl_b32 s19, s20, 11")
    A("s_lshl_b32 s28, s21, 7")
    A("s_add_u32 s19, s19, s28")
    A("v_and_b32 v104, 1, v2")
    A("v_lshlrev_b32 v104, 10, v104")
    A("v_lshrrev_b32 v9, 5, v0")
    A("v_lshl_add_u32 v104, v9, 6, v104")
    A("v_lshl_add_u32 v103, v1, 2, v104")
    A("v_lshl_add_u32 v104, v1, 1, v104")
    A("s_add_u32 s22, s19, s31")
    A(f"s_add_u32 s22, s22, {HR_O}")
    A("s_lshl_b32 s28, s21, 14")
    A("s_lshl_b32 s16, s4, 10")
    A("s_add_u32 s28, s28, s16")
    A("s_lshl_b32 s16, s20, 9")
    A("s_add_u32 s28, s28, s16")
    A(f"s_add_u32 s28, s28, {CR}")
    A("v_and_b32 v100, 31, v0")
    A("v_lshl_add_u32 v100, v100, 4, s28")
    A("v_lshl_add_u32 v100, v9, 13, v100")
    tag_fin()
    spin_head("L_k_spin", "L_k_ok")
    A(f"ds_read_b32 v45, v3 offset:{KCNT}")
    A("s_waitcnt lgkmcnt(0)")
    A("v_readfirstlane_b32 s16, v45")
    A(f"s_cmp_ge_u32 s16, {o['kcnt']}")
    A("s_cbranch_scc1 L_k_ok")
    A("s_sleep 4")
    A("s_branch L_k_spin")
    A.label("L_k_ok")
    stamp(2)
    A("s_mov_b32 s29, s27")
    def q_issue(base, so):
        A(f"buffer_load_dwordx4 v[{base}:{base+3}], v8, s[8:11], s{so} offen sc1")
        A(f"buffer_load_dwordx4 v[{base+4}:{base+7}], v8, s[8:11], s{so} offen offset:1024 sc1")
        A(f"buffer_load_dwordx2 v[{base+8}:{base+9}], v47, s[8:11], s{so} offen sc1")
    def q_check(base):
        A(f"v_xor_b32 v40, s24, v{base+1}")
        A(f"v_xor_b32 v41, s24, v{base+3}")
        A(f"v_xor_b32 v42, s24, v{base+5}")
        A("v_or3_b32 v40, v40, v41, v42")
        A(f"v_xor_b32 v41, s24, v{base+7}")
        A("v_or_b32 v40, v40, v41")
        A("v_cmp_ne_u32 vcc, 0, v40")
    q_issue(12, 27)
    A("s_sleep 8")
    spin_head("L_q_poll", "L_q_ok")
    q_issue(24, 29)
    A("s_waitcnt vmcnt(3)")
    q_check(12)
    A("s_cbranch_vccz L_q_ok")
    q_issue(12, 27)
    A("s_cmp_ge_u32 s30, 3")
    A(f"s_cselect_b32 s29, {QG}, 0")
    A("s_add_u32 s29, s29, s27")
    A("s_waitcnt vmcnt(3)")
    q_check(24)
    A("s_cbranch_vccnz L_q_poll")
    for i in range(10): A(f"v_mov_b32 v{48+i}, v{24+i}")
    A("s_branch L_q_ok2")
    A.label("L_q_ok")
    for i in range(10): A(f"v_mov_b32 v{48+i}, v{12+i}")
    A.label("L_q_ok2")
    for i in range(2):
        for p in range(2):
            r = 48 + 4*i + 2*p
            A(f"ds_write_b16 v44, v{r} offset:{QL+512*i+64*p}")
            A(f"ds_write_b16_d16_hi v44, v{r} offset:{QL+512*i+64*p+32}")
    A("v_mov_b32 v45, 1")
    A(f"ds_write_b32 v3, v45 offset:{QFLAG}")
    stamp(3)
    A("v_lshrrev_b32 v45, 5, v0")
    A(f"v_mul_u32_u24 v45, {QG}, v45")
    A("v_add_u32 v47, v47, v45")
    spin_head("L_gs2_poll", "L_gs2_ok")
    A("v_cmp_eq_u32 vcc, s24, v57")
    A("s_cbranch_vccnz L_gs2_ok")
    A("buffer_load_dwordx2 v[56:57], v47, s[8:11], s27 offen sc1")
    A("s_waitcnt vmcnt(0)")
    A("s_branch L_gs2_poll")
    A.label("L_gs2_ok")
    A("s_mov_b64 exec, vcc")
    A("s_nop 0")
    A("v_readfirstlane_b32 s26, v56")
    A("s_mov_b64 exec, -1")
    A("v_mov_b32 v45, s26")
    A(f"ds_write_b32 v3, v45 offset:{LFLAG}")
    stamp(10)
    A("s_cmp_ge_u32 s7, 3")
    A("s_cselect_b32 s27, 8, 0")
    A("s_lshl_b32 s28, s7, 3")
    A("s_add_u32 s27, s27, s28")
    A("s_lshl_b32 s28, s6, 8")
    A("s_add_u32 s27, s27, s28")
    A("s_add_u32 s27, s27, s31")
    A(f"s_add_u32 s27, s27, {BS_O}")
    A("v_lshlrev_b32 v46, 6, v2")
    A("v_lshlrev_b32 v9, 4, v2")
    A("s_waitcnt lgkmcnt(0)")
    A("s_barrier")
    A(f"ds_read_b128 v[60:63], v9 offset:{MAXA}")
    A(f"ds_read2st64_b32 v[64:65], v6 offset0:{LACC//256} offset1:{LACC//256+1}")
    A(f"ds_read2st64_b32 v[66:67], v6 offset0:{LACC//256+2} offset1:{LACC//256+3}")
    A("s_waitcnt lgkmcnt(0)")
    A("v_max3_f32 v60, v60, v61, v62")
    A("v_max_f32 v60, v60, v63")
    A("v_add_f32 v64, v64, v65")
    A("v_add_f32 v66, v66, v67")
    A("v_add_f32 v61, v64, v66")
    A("v_min_u32 v60, -2, v60")
    A("v_min_u32 v61, -2, v61")
    A("s_mov_b32 exec_lo, 0x00010001")
    A("s_mov_b32 exec_hi, 0x00010001")
    lstore("buffer_store_dwordx2 v[60:61], v46, s[8:11], s27 offen")
    A("s_mov_b64 exec, -1")
    stamp(4)
    A("s_cmp_ge_u32 s7, 4")
    A("s_cbranch_scc1 L_final")
    A(f"s_mov_b32 s29, {H2}")
    A("buffer_load_ushort v101, v104, s[12:15], s19 offen")
    A("buffer_load_ushort v102, v104, s[12:15], s19 offen offset:32")
    A("buffer_load_dword v40, v6, s[8:11], s29 offen sc1")
    A("s_lshl_b32 s27, s17, 13")
    A(f"s_add_u32 s27, s27, {CR}")
    A("s_barrier")
    A("s_barrier")
    stamp(5)
    spin_head("L_gf_poll", "L_gf_ok")
    A("s_waitcnt vmcnt(0)")
    A("v_cmp_ne_u32 vcc, s24, v40")
    A("s_cbranch_vccz L_gf_ok")
    A("buffer_load_dword v40, v6, s[8:11], s29 offen sc1")
    A("s_branch L_gf_poll")
    A.label("L_gf_ok")
    A("v_lshlrev_b32 v101, 16, v101")
    A("v_lshlrev_b32 v102, 16, v102")
    stamp(6)
    A("s_barrier")
    for k in range(4): A(f"ds_read_b128 v[{12+4*k}:{15+4*k}], v5 offset:{CACC+1024*k}")
    A("s_waitcnt lgkmcnt(0)")
    for i in range(4): A(f"v_pk_add_f32 v[{12+2*i}:{13+2*i}], v[{12+2*i}:{13+2*i}], v[{20+2*i}:{21+2*i}]")
    for i in range(2): A(f"v_pk_add_f32 v[{12+2*i}:{13+2*i}], v[{12+2*i}:{13+2*i}], v[{16+2*i}:{17+2*i}]")
    for i in range(4): A(f"v_min_u32 v{12+i}, -2, v{12+i}")
    A("buffer_store_dwordx4 v[12:15], v100, s[8:11], 0 offen sc1")
    stamp(7)
    spin_head("L_c_poll", "L_c_ok")
    for i in range(8):
        A(f"buffer_load_dwordx4 v[{16+4*i}:{19+4*i}], v{5 if i < 4 else 7}, s[8:11], s27 offen offset:{(i&3)*1024} sc1")
    A("s_waitcnt vmcnt(0)")
    max_tree(48, range(16, 32))
    max_tree(49, range(32, 48))
    A("v_max_u32 v48, v48, v49")
    A("v_cmp_eq_u32 vcc, -1, v48")
    A("s_cbranch_vccnz L_c_poll")
    A.label("L_c_ok")
    stamp(8)
    for i in range(8): A(f"v_pk_add_f32 v[{16+2*i}:{17+2*i}], v[{16+2*i}:{17+2*i}], v[{32+2*i}:{33+2*i}]")
    for i in range(4): A(f"v_pk_add_f32 v[{16+2*i}:{17+2*i}], v[{16+2*i}:{17+2*i}], v[{24+2*i}:{25+2*i}]")
    for i in range(2): A(f"v_pk_add_f32 v[{16+2*i}:{17+2*i}], v[{16+2*i}:{17+2*i}], v[{20+2*i}:{21+2*i}]")
    A("v_permlane32_swap_b32 v16, v18")
    A("v_permlane32_swap_b32 v17, v19")
    A("v_add_f32 v16, v16, v18")
    A("v_add_f32 v17, v17, v19")
    A("v_cvt_pk_bf16_f32 v16, v16, v17")
    A("v_and_b32 v17, s23, v16")
    A("v_lshlrev_b32 v16, 16, v16")
    A("v_add_f32 v16, v16, v101")
    A("v_add_f32 v17, v17, v102")
    A("v_cvt_pk_bf16_f32 v16, v16, v17")
    A("v_min_u32 v16, -2, v16")
    lstore("buffer_store_dword v16, v103, s[8:11], s22 offen")
    stamp(9)
    end()
    A.label("L_final")
    A("s_barrier")
    srd(12, P_OUT, 0x1000)
    A("s_sub_u32 s20, s7, 4")
    A("v_and_b32 v8, 7, v0")
    A("s_lshl_b32 s27, s20, 3")
    A("v_add_u32 v8, s27, v8")
    A("v_lshrrev_b32 v9, 5, v0")
    A("v_lshlrev_b32 v9, 6, v9")
    A("v_lshl_add_u32 v9, v8, 2, v9")
    A("s_lshl_b32 s27, s6, 10")
    A("s_lshl_b32 s28, s4, 7")
    A("s_add_u32 s21, s27, s28")
    A("s_add_u32 s27, s21, s31")
    A(f"s_add_u32 s27, s27, {HR_O}")
    A("v_lshlrev_b32 v10, 5, v2")
    A("v_lshl_add_u32 v10, v8, 1, v10")
    A("v_and_b32 v11, 1, v2")
    A("v_lshlrev_b32 v11, 4, v11")
    A("s_lshl_b32 s28, s4, 3")
    A("s_lshl_b32 s29, s6, 1")
    A("s_add_u32 s28, s28, s29")
    A("s_add_u32 s28, s28, s20")
    A(f"s_mul_i32 s29, s28, {DRS}")
    A(f"s_add_u32 s29, s29, {DR}")
    spin_head("L_fh_poll", "L_fh_ok")
    A("s_sleep 4")
    A("buffer_load_dword v12, v9, s[8:11], s27 offen sc1")
    A("s_waitcnt vmcnt(0)")
    A("v_cmp_eq_u32 vcc, -1, v12")
    A("s_cbranch_vccnz L_fh_poll")
    A.label("L_fh_ok")
    stamp(7)
    A("v_lshrrev_b32 v12, v11, v12")
    A("v_lshlrev_b32 v12, 16, v12")
    spin_head("L_d_poll", "L_d_ok")
    for i in range(7):
        A(f"buffer_load_dwordx4 v[{16+4*i}:{19+4*i}], v{5 if i < 4 else 7}, s[8:11], s29 offen offset:{(i&3)*1024} sc1")
    A("s_waitcnt vmcnt(0)")
    max_tree(48, range(16, 30))
    max_tree(49, range(30, 44))
    A("v_max_u32 v48, v48, v49")
    A("v_cmp_eq_u32 vcc, -1, v48")
    A("s_cbranch_vccnz L_d_poll")
    A.label("L_d_ok")
    stamp(8)
    for i in range(6): A(f"v_pk_add_f32 v[{16+2*i}:{17+2*i}], v[{16+2*i}:{17+2*i}], v[{32+2*i}:{33+2*i}]")
    for i in range(4): A(f"v_pk_add_f32 v[{16+2*i}:{17+2*i}], v[{16+2*i}:{17+2*i}], v[{24+2*i}:{25+2*i}]")
    for i in range(2): A(f"v_pk_add_f32 v[{16+2*i}:{17+2*i}], v[{16+2*i}:{17+2*i}], v[{20+2*i}:{21+2*i}]")
    A("v_permlane32_swap_b32 v16, v18")
    A("v_permlane32_swap_b32 v17, v19")
    A("v_add_f32 v16, v16, v18")
    A("v_add_f32 v17, v17, v19")
    A("v_permlane16_swap_b32 v16, v17")
    A("v_add_f32 v16, v16, v17")
    A("v_add_f32_dpp v16, v16, v16 row_ror:8 row_mask:0xf bank_mask:0xf")
    A("v_cvt_pk_bf16_f32 v16, v16, v16")
    A("v_and_b32 v16, s23, v16")
    A("v_add_f32 v16, v16, v12")
    A("v_cvt_pk_bf16_f32 v16, v16, v16")
    A("s_mov_b32 exec_lo, 0x00ff00ff")
    A("s_mov_b32 exec_hi, 0x00ff00ff")
    A("buffer_store_short v16, v10, s[12:15], s21 offen")
    A("s_cmp_lg_u32 s28, 0")
    A("s_cbranch_scc1 L_final_done")
    A("s_mov_b64 exec, 1")
    A("v_mov_b32 v17, s24")
    A("buffer_store_dword v17, v3, s[8:11], 0 offen sc1")
    A.label("L_final_done")
    A("s_mov_b64 exec, -1")
    stamp(9)
    end()

    A.label("L_ffn")
    A("s_cmp_eq_u32 s5, 31")
    A(f"s_cbranch_scc1 {EXIT}")
    A("s_setprio 0")
    A("s_mul_i32 s26, s4, 7")
    A("s_add_u32 s26, s26, s21")
    A("v_lshrrev_b32 v4, 3, v0")
    A("v_and_b32 v5, 7, v0")
    A("v_and_b32 v6, 2, v4")
    A("v_xor_b32 v5, v5, v6")
    A("v_lshlrev_b32 v5, 4, v5")
    A("v_lshl_add_u32 v4, v4, 10, v5")
    A("v_xor_b32 v5, 64, v4")
    A("s_lshl_b32 s27, s26, 15")
    A("s_lshl_b32 s28, s3, 7")
    A("s_add_u32 s27, s27, s28")
    A("s_lshl_b32 s22, s3, 12")
    A(f"s_add_u32 s22, s22, {DOWN}")
    A("v_lshrrev_b32 v6, 2, v0")
    A("v_and_b32 v7, 9, v6")
    A("v_bfe_u32 v12, v6, 1, 1")
    A("v_lshl_add_u32 v7, v12, 2, v7")
    A("v_bfe_u32 v12, v6, 2, 1")
    A("v_lshl_add_u32 v7, v12, 1, v7")
    A("v_mul_u32_u24 v6, 3584, v7")
    A("v_and_b32 v7, 3, v0")
    A("v_lshl_add_u32 v6, v7, 4, v6")
    A("v_xor_b32 v7, 32, v6")
    A(f"s_mul_i32 s28, s3, {128*3584}")
    A("s_lshl_b32 s29, s26, 6")
    A("s_add_u32 s28, s28, s29")
    A("s_lshl_b32 s23, s3, 13")
    A(f"s_add_u32 s23, s23, {GATE}")
    srd(12, P_WG, 512*3584)
    srd(16, P_WU, 512*3584)
    srd(56, P_WD, 1792*1024)
    spin_head("L_f1_spin", "L_f1_go")
    A("s_sleep 4")
    A(f"ds_read_b64 v[12:13], v3 offset:{QFLAG}")
    A("s_waitcnt lgkmcnt(0)")
    A("v_add_u32 v12, v12, v13")
    A("v_readfirstlane_b32 s29, v12")
    A("s_cmp_lt_u32 s29, 5")
    A("s_cbranch_scc1 L_f1_spin")
    A.label("L_f1_go")
    stamp(7)
    A("s_cmp_gt_u32 s3, 3")
    A("s_cbranch_scc1 L_f_dn")
    A("s_mov_b32 s29, s28")
    A("s_mov_b32 s21, s23")
    for m in range(2):
        for i in range(8):
            A("s_mov_b32 m0, s21")
            A("s_add_u32 s21, s21, 1024")
            A(f"buffer_load_dwordx4 v{6+(i&1)}, s[{12+4*m}:{15+4*m}], s29 offen nt lds")
            A(f"s_add_u32 s29, s29, {16*3584}")
        if m == 0:
            A("s_mov_b32 s29, s28")
            A("s_add_u32 s21, s23, 32768")
    A.label("L_f_dn")
    A("s_mov_b32 s21, s22")
    for i in range(4):
        A("s_mov_b32 m0, s21")
        A("s_add_u32 s21, s21, 1024")
        A(f"buffer_load_dwordx4 v{4+(i&1)}, s[56:59], s27 offen nt lds")
        A("s_add_u32 s27, s27, 8192")
    stamp(8)
    A("v_bfe_u32 v8, v0, 2, 2")
    A("v_and_b32 v9, 3, v0")
    A("v_lshlrev_b32 v104, 10, v2")
    A("v_lshl_add_u32 v104, v8, 7, v104")
    A("v_lshl_add_u32 v104, v9, 3, v104")
    A("v_lshrrev_b32 v10, 1, v8")
    A("v_and_b32 v11, 1, v2")
    A("v_lshl_add_u32 v12, v11, 1, v10")
    A("v_lshl_add_u32 v104, v12, 5, v104")
    A("v_add_u32 v104, s22, v104")
    A("v_xor_b32 v105, 32, v104")
    A("v_xor_b32 v106, 64, v104")
    A("v_xor_b32 v107, 0x60, v104")
    A("v_and_b32 v13, 1, v8")
    A("v_mul_u32_u24 v108, 1056, v13")
    A("v_lshl_add_u32 v108, v12, 6, v108")
    A("v_lshrrev_b32 v13, 1, v2")
    A("v_lshl_add_u32 v108, v13, 9, v108")
    A("v_lshl_add_u32 v108, v9, 3, v108")
    A("v_add_u32 v108, s23, v108")
    A("v_xor_b32 v109, 32, v108")
    A("v_lshlrev_b32 v110, 8, v13")
    A("v_lshl_add_u32 v110, v8, 6, v110")
    A("v_lshl_add_u32 v110, v11, 5, v110")
    A("v_lshl_add_u32 v110, v9, 3, v110")
    A(f"v_add_u32 v110, {GACC}, v110")
    A("v_lshlrev_b32 v111, 3, v8")
    A("s_lshl_b32 s27, s3, 10")
    A("v_lshl_add_u32 v112, v0, 2, s27")
    for i in range(4): A(f"v_cmp_eq_u32 s[{32+2*i}:{33+2*i}], {i}, v9")
    A("v_lshrrev_b32 v113, 3, v0")
    A(f"v_mul_u32_u24 v113, {DRS}, v113")
    A("v_and_b32 v13, 7, v0")
    A("v_lshl_add_u32 v113, v13, 4, v113")
    A(f"s_mul_i32 s28, s3, {8*DRS}")
    A("s_lshl_b32 s29, s26, 7")
    A("s_add_u32 s28, s28, s29")
    A(f"s_add_u32 s28, s28, {DR}")
    A("s_lshl_b32 s31, s4, 15")
    A(f"s_add_u32 s31, s31, {GL+HR_O}")
    A("s_mov_b32 s23, 0xffff0000")
    A(f"s_mov_b32 s21, {LOG2E | 0x80000000:#x}")
    DF = 88
    GB = 24
    ACC = [4, 116, 120, 124]
    def down_reads():
        for tau in range(4):
            r = DF + 4*tau
            A(f"ds_read_b64_tr_b16 v[{r}:{r+1}], v{104+tau}")
            A(f"ds_read_b64_tr_b16 v[{r+2}:{r+3}], v{104+tau} offset:512")
    def acc_write(base):
        A(f"ds_write2st64_b32 v112, v{ACC[0]}, v{ACC[1]} offset0:{base//256} offset1:{base//256+1}")
        A(f"ds_write2st64_b32 v112, v{ACC[2]}, v{ACC[3]} offset0:{base//256+2} offset1:{base//256+3}")
    def sum4(dst, off):
        for k in range(4):
            A(f"ds_read2st64_b64 v[{8+4*k}:{11+4*k}], v110 offset0:{(off+1024*k)//512} offset1:{(off+1024*k)//512+1}")
    A("s_cmp_gt_u32 s3, 3")
    A("s_cbranch_scc1 L_f_stat")
    A("v_lshlrev_b32 v114, 10, v8")
    A("v_lshl_add_u32 v114, v2, 4, v114")
    A("s_lshl_b32 s27, s3, 8")
    A("s_add_u32 s27, s27, s31")
    for i in range(4): A(f"v_mov_b32 v{8+i}, 0x3f803f80")
    for m in range(2):
        A(f"s_waitcnt vmcnt({12 - 8*m})")
        for ks in range(4):
            for t2 in range(2):
                r = GB + 32*m + 8*ks + 4*t2
                A(f"ds_read_b64_tr_b16 v[{r}:{r+1}], v{108+t2} offset:{m*32768+ks*2048}")
                A(f"ds_read_b64_tr_b16 v[{r+2}:{r+3}], v{108+t2} offset:{m*32768+ks*2048+256}")
    A("s_waitcnt lgkmcnt(0)")
    for ks in range(4):
        for j in range(4):
            m, t2 = j >> 1, j & 1
            r = GB + 32*m + 8*ks + 4*t2
            d = ACC[j]
            A(f"v_mfma_f32_16x16x32_bf16 v[{d}:{d+3}], v[8:11], v[{r}:{r+3}], {'0' if ks == 0 else f'v[{d}:{d+3}]'}")
    acc_write(CSUM)
    A("s_branch L_f_cs")
    A.label("L_f_stat")
    A("v_lshlrev_b32 v114, 4, v0")
    A("s_sub_u32 s29, s3, 4")
    A("s_lshl_b32 s27, s29, 10")
    A("s_add_u32 s27, s27, s31")
    A("s_lshl_b32 s29, s29, 3")
    A("v_mov_b32 v115, s29")
    A.label("L_f_cs")
    A("s_waitcnt vmcnt(0)")
    stamp(9)
    down_reads()
    A("s_waitcnt lgkmcnt(0)")
    A("s_barrier")
    sum4(0, CSUM - GACC)
    A("s_waitcnt lgkmcnt(0)")
    for i in range(4): A(f"v_pk_add_f32 v[{8+2*i}:{9+2*i}], v[{8+2*i}:{9+2*i}], v[{16+2*i}:{17+2*i}]")
    for i in range(2): A(f"v_pk_add_f32 v[{104+2*i}:{105+2*i}], v[{8+2*i}:{9+2*i}], v[{12+2*i}:{13+2*i}]")
    A("s_setprio 3")
    stamp(10)
    A("s_cmp_gt_u32 s3, 3")
    A("s_cbranch_scc1 L_f_stat2")
    spin_head("L_g_poll", "L_g_ok")
    for ks in range(4):
        A(f"buffer_load_dwordx4 v[{8+4*ks}:{11+4*ks}], v114, s[8:11], s27 offen offset:{64*ks} sc1")
    A("s_waitcnt vmcnt(0)")
    max_tree(115, range(8, 24))
    A("v_cmp_eq_u32 vcc, -1, v115")
    A("s_cbranch_vccnz L_g_poll")
    A.label("L_g_ok")
    stamp(11)
    for ks in range(4):
        for j in range(4):
            m, t2 = j >> 1, j & 1
            r = GB + 32*m + 8*ks + 4*t2
            d = ACC[j]
            A(f"v_mfma_f32_16x16x32_bf16 v[{d}:{d+3}], v[{8+4*ks}:{11+4*ks}], v[{r}:{r+3}], {'0' if ks == 0 else f'v[{d}:{d+3}]'}")
    acc_write(GACC)
    A("s_branch L_f_join")
    A.label("L_f_stat2")
    spin_head("L_s_poll", "L_s_ok")
    A("buffer_load_dwordx4 v[8:11], v114, s[8:11], s27 offen sc1")
    A("s_waitcnt vmcnt(0)")
    max_tree(12, range(8, 12))
    A("v_cmp_eq_u32 vcc, -1, v12")
    A("s_cbranch_vccnz L_s_poll")
    A.label("L_s_ok")
    stamp(11)
    for i in range(4):
        A(f"v_lshlrev_b32 v{12+2*i}, 16, v{8+i}")
        A(f"v_and_b32 v{13+2*i}, s23, v{8+i}")
    A("v_pk_add_f32 v[20:21], v[12:13], v[14:15]")
    A("v_pk_mul_f32 v[24:25], v[12:13], v[12:13]")
    A("v_pk_add_f32 v[22:23], v[16:17], v[18:19]")
    A("v_pk_fma_f32 v[24:25], v[14:15], v[14:15], v[24:25]")
    A("v_pk_add_f32 v[20:21], v[20:21], v[22:23]")
    A("v_pk_fma_f32 v[24:25], v[16:17], v[16:17], v[24:25]")
    A("v_add_f32 v20, v20, v21")
    A("v_pk_fma_f32 v[24:25], v[18:19], v[18:19], v[24:25]")
    A("v_add_f32 v21, v24, v25")
    A("v_permlane32_swap_b32 v20, v21")
    A("v_add_f32 v20, v20, v21")
    A("v_mov_b32 v21, v20")
    A("v_permlane16_swap_b32 v20, v21")
    A("v_add_f32 v20, v20, v21")
    rowsum(20)
    A("v_mul_f32 v20, 0x3b000000, v20")
    A("v_mov_b32 v21, v20")
    A("v_permlane32_swap_b32 v20, v21")
    A("v_fma_f32 v21, -v20, v20, v21")
    A("v_max_f32 v21, 0, v21")
    A(f"v_add_f32 v21, {EPS:#x}, v21")
    A("v_rsq_f32 v21, v21")
    A(f"ds_write_b64 v115, v[20:21] offset:{STAT}")
    A.label("L_f_join")
    A("s_waitcnt lgkmcnt(0)")
    A("s_barrier")
    stamp(12)
    sum4(0, 0)
    A(f"ds_read_b64 v[24:25], v111 offset:{STAT}")
    A("s_waitcnt lgkmcnt(0)")
    for i in range(4): A(f"v_pk_add_f32 v[{8+2*i}:{9+2*i}], v[{8+2*i}:{9+2*i}], v[{16+2*i}:{17+2*i}]")
    for i in range(2): A(f"v_pk_add_f32 v[{8+2*i}:{9+2*i}], v[{8+2*i}:{9+2*i}], v[{12+2*i}:{13+2*i}]")
    for i in range(4): A(f"v_fma_f32 v{8+i}, -v24, v{104+i}, v{8+i}")
    for i in range(4): A(f"v_mul_f32 v{8+i}, v25, v{8+i}")
    A("v_cvt_pk_bf16_f32 v12, v8, v9")
    A("v_cvt_pk_bf16_f32 v13, v10, v11")
    A("v_lshlrev_b32 v8, 16, v12")
    A("v_and_b32 v9, s23, v12")
    A("v_mul_f32 v8, s21, v8")
    A("v_mul_f32 v9, s21, v9")
    A("v_exp_f32 v8, v8")
    A("v_exp_f32 v9, v9")
    A("v_lshlrev_b32 v10, 16, v13")
    A("v_and_b32 v11, s23, v13")
    A("v_add_f32 v8, 1.0, v8")
    A("v_add_f32 v9, 1.0, v9")
    A("v_rcp_f32 v8, v8")
    A("v_rcp_f32 v9, v9")
    A("v_cvt_pk_bf16_f32 v12, v8, v9")
    A("v_lshlrev_b32 v8, 16, v12")
    A("v_and_b32 v9, s23, v12")
    A("v_mul_f32 v8, v8, v10")
    A("v_mul_f32 v9, v9, v11")
    A("v_cvt_pk_bf16_f32 v12, v8, v9")
    for i in range(4): A(f"v_cndmask_b32 v{16+i}, 0, v12, s[{32+2*i}:{33+2*i}]")
    for tau in range(4):
        A(f"v_mfma_f32_16x16x32_bf16 v[{24+4*tau}:{27+4*tau}], v[16:19], v[{DF+4*tau}:{DF+4*tau+3}], 0")
    for tau in range(4):
        d = 24 + 4*tau
        A(f"v_pk_add_f32 v[{d}:{d+1}], v[{d}:{d+1}], v[{d+2}:{d+3}]")
        A(f"v_add_f32 v{d}, v{d}, v{d+1}")
        A(f"v_min_u32 v{20+tau}, -2, v{d}")
    A("buffer_store_dwordx4 v[20:23], v113, s[8:11], s28 offen sc1")
    stamp(13)
    if stamps:
        A.label("L_endstamp")
        A("s_mov_b64 exec, -1")
        stamp(15)
        A("s_waitcnt lgkmcnt(0)")
        for i in range(6): A("s_barrier")
        if o.get("probe"):
            att, wlo, whi, st, k = o["probe"]
            A("s_mov_b32 s27, 0")
            A("s_cmp_lt_u32 s5, 24")
            A(f"s_cbranch_scc{0 if att else 1} L_pr_go")
            A(f"s_cmp_lt_u32 s3, {wlo}")
            A("s_cbranch_scc1 L_pr_go")
            A(f"s_cmp_gt_u32 s3, {whi}")
            A("s_cbranch_scc1 L_pr_go")
            A(f"s_cmp_eq_u32 s{64+2*st}, 0")
            A("s_cbranch_scc1 L_pr_go")
            A(f"s_sub_u32 s27, s{64+2*st}, s64")
            A(f"s_mul_i32 s27, s27, {k}")
            A.label("L_pr_go")
            A("s_add_u32 s27, s27, 3000")
            A.label("L_pr_spin")
            A("s_sleep 4")
            A("s_memrealtime s[28:29]")
            A("s_waitcnt lgkmcnt(0)")
            A("s_sub_u32 s28, s28, s64")
            A("s_cmp_lt_u32 s28, s27")
            A("s_cbranch_scc1 L_pr_spin")
        else:
            A("v_mov_b32 v8, 0")
            for i in range(16): A(f"v_writelane_b32 v8, s{64+2*i}, {i}")
            A("s_lshl_b32 s27, s2, 4")
            A("s_add_u32 s27, s27, s3")
            A("s_lshl_b32 s27, s27, 6")
            A(f"s_add_u32 s27, s27, {STAMPS}")
            A("v_lshlrev_b32 v9, 2, v0")
            A("s_mov_b64 exec, 0xffff")
            A("buffer_store_dword v8, v9, s[8:11], s27 offen")
    A.label("L_exit")
    A("s_endpgm")
    A.label("L_code_end")
    A.raw('.section .rodata,"a"\n.p2align 6')
    A.raw(f".amdhsa_kernel {KNAME}")
    A.raw("  .amdhsa_next_free_vgpr 128\n  .amdhsa_next_free_sgpr 96\n  .amdhsa_accum_offset 128")
    A.raw("  .amdhsa_group_segment_fixed_size 0\n  .amdhsa_kernarg_size 96\n  .amdhsa_user_sgpr_count 2\n  .amdhsa_user_sgpr_kernarg_segment_ptr 1\n  .amdhsa_system_sgpr_workgroup_id_x 1\n  .amdhsa_float_denorm_mode_32 3")
    A.raw(".end_amdhsa_kernel")
    return A.text()

if __name__ == "__main__":
    out = sys.argv[1] if len(sys.argv) > 1 else "sequential_preLN__sliding_block_cached__glu_gated_glu__decode.s"
    stamps = len(sys.argv) > 2 and sys.argv[2] == "1"
    opts = eval(sys.argv[3]) if len(sys.argv) > 3 else None
    open(out, "w").write(gen(stamps, opts))
```

```python
import sys
from asmlib import Asm

KNAME = "sequential_preLN__sliding_block_cached__glu_gated_glu__decode_kernel"

H2 = 0x3000
QA = 0x10000
QG = 0x20000
GS_O = 0x2000
HL_O = 0x2100
GL = 0x60000
BS_O = 0x6000
HR_O = 0x7000
CR = 0x100000
DR = 0x200000
DRS = 7168
STAMPS = 0x800000
QFLAG = 0
ACNT = 4
KCNT = 8
LFLAG = 12
MAXA = 64
LACC = 256
QL = 2048
CACC = 4096
WL = 8192
KL = 40960
STAT = 64
XN = 2048
QP = 8192
GACC = 12288
CSUM = 16384
GATE = 40960
DOWN = 106496
LDS_BYTES = 139264

SPIN = 1 << 16
LOG2E = 0x3fb8aa3b
SCALE = 0x3db504f3
EPS = 0x3727c5ac

def gen(stamps=False, opts=None):
    o = dict(kf="nt", vf="nt", wf="nt", trigger="stats", prefetch=True, wqpf=True, kcnt=1, probev=False)
    if opts: o.update(opts)
    A = Asm()
    EXIT = "L_endstamp" if stamps else "L_exit"
    def stamp(i):
        if stamps: A(f"s_memrealtime s[{64+2*i}:{65+2*i}]")
    def end():
        if stamps: A("s_branch L_endstamp")
        else: A("s_endpgm")
    def srd(d, p, nbytes):
        A(f"s_mov_b64 s[{d}:{d+1}], s[{p}:{p+1}]")
        A(f"s_mov_b32 s{d+2}, {nbytes:#x}")
        A(f"s_mov_b32 s{d+3}, 0x20000")
    P_X, P_K, P_V, P_WQ, P_WO, P_WG, P_WU, P_WD, P_OUT, P_DBG, P_WS = 32, 34, 36, 38, 40, 44, 46, 48, 50, 52, 54
    def spin_head(lbl, out):
        A("s_mov_b32 s30, 0")
        A.label(lbl)
        A("s_add_u32 s30, s30, 1")
        A(f"s_cmp_gt_u32 s30, {SPIN}")
        A(f"s_cbranch_scc1 {out}")
    def max_tree(dst, regs, op="v_max3_u32", op2="v_max_u32"):
        regs = list(regs)
        first = True
        while regs:
            if first:
                if len(regs) >= 3:
                    A(f"{op} v{dst}, v{regs[0]}, v{regs[1]}, v{regs[2]}"); regs = regs[3:]
                elif len(regs) == 2:
                    A(f"{op2} v{dst}, v{regs[0]}, v{regs[1]}"); regs = []
                else:
                    A(f"v_mov_b32 v{dst}, v{regs[0]}"); regs = []
                first = False
            elif len(regs) >= 2:
                A(f"{op} v{dst}, v{dst}, v{regs[0]}, v{regs[1]}"); regs = regs[2:]
            else:
                A(f"{op2} v{dst}, v{dst}, v{regs[0]}"); regs = []
    def tag_issue():
        A(f"s_load_dword s24, s[{P_WS}:{P_WS+1}], 0")
    def tag_fin():
        A("s_waitcnt lgkmcnt(0)")
        A("s_and_b32 s24, s24, -16")
        A("s_add_u32 s24, s24, 16")
    def ctl_base(sd):
        A(f"s_lshl_b32 s{sd}, s4, 14")
        A(f"s_add_u32 s{sd}, s{sd}, {QA}")
    def dual_store(ins, so):
        A(ins)
        A(f"s_add_u32 s{so}, s{so}, {QG}")
        A(ins + " sc1")
    def hello(va):
        A("s_getreg_b32 s25, hwreg(HW_REG_XCC_ID, 0, 4)")
        ctl_base(27)
        A("s_lshl_b32 s30, s5, 3")
        A("s_add_u32 s27, s27, s30")
        A(f"s_add_u32 s27, s27, {HL_O}")
        A(f"v_mov_b32 v{va}, s25")
        tag_fin()
        A(f"v_mov_b32 v{va+1}, s24")
        A("s_mov_b64 exec, 1")
        dual_store(f"buffer_store_dwordx2 v[{va}:{va+1}], v3, s[8:11], s27 offen", 27)
        A("s_mov_b64 exec, -1")
    def lstore(ins):
        l1, l2 = A.newlabel("L_ls"), A.newlabel("L_ls")
        A("s_cmp_lg_u32 s26, 2")
        A(f"s_cbranch_scc1 {l1}")
        A(ins)
        A(f"s_branch {l2}")
        A.label(l1)
        A(ins + " sc1")
        A.label(l2)
    def rowsum(r):
        for k in (8, 4, 2, 1):
            A(f"v_add_f32_dpp v{r}, v{r}, v{r} row_ror:{k} row_mask:0xf bank_mask:0xf")

    hdr = open("sequential_preLN__sliding_block_cached__glu_gated_glu__decode.s.ref").read().split("\n")
    for l in hdr:
        if l.startswith(";") and "@launch" not in l and "Override" not in l and "grid=ceil" not in l: A.raw(l)
        elif not l.startswith(";"): break
    A.raw(f"; @launch grid=(256,1,1) block=(1024,1,1) lds={LDS_BYTES}")
    A.raw('.amdgcn_target "amdgcn-amd-amdhsa--gfx950"')
    A.raw(f".text\n.globl {KNAME}\n.p2align 8\n.type {KNAME},@function\n{KNAME}:")
    A("s_cmp_ge_u32 s2, 256")
    A("s_cbranch_scc1 L_exit")
    A("s_load_dwordx16 s[32:47], s[0:1], 0")
    A("s_load_dwordx8 s[48:55], s[0:1], 64")
    stamp(0)
    A("v_lshrrev_b32 v1, 6, v0")
    A("v_mov_b32 v3, 0")
    A("v_readfirstlane_b32 s3, v1")
    A("v_and_b32 v0, 63, v0")
    A("v_mov_b32 v4, 0")
    A("v_mov_b32 v5, 0")
    A("ds_write_b96 v3, v[4:6]".replace("v[4:6]", "v[4:6]") if False else "ds_write_b64 v3, v[4:5]")
    A("ds_write_b32 v3, v4 offset:8")
    A("s_and_b32 s4, s2, 7")
    A("s_lshr_b32 s5, s2, 3")
    A("v_and_b32 v1, 15, v0")
    A("v_lshrrev_b32 v2, 4, v0")
    A("s_mul_i32 s6, s5, 43")
    A("s_lshr_b32 s6, s6, 8")
    A("s_mul_i32 s7, s6, 6")
    A("s_sub_u32 s7, s5, s7")
    A("s_mul_i32 s28, s7, 11")
    A("s_cmp_eq_u32 s7, 5")
    A("s_cselect_b32 s28, 54, s28")
    A("s_cmp_ge_u32 s7, 4")
    A("s_cselect_b32 s29, 10, 11")
    A("s_lshl_b32 s27, s6, 3")
    A("s_add_u32 s27, s27, s4")
    A("s_lshl_b32 s27, s27, 8")
    A("s_add_u32 s28, s28, s27")
    A("s_cmp_ge_u32 s3, 5")
    A("s_cselect_b32 s27, 5, 1")
    A("s_sub_u32 s27, s3, s27")
    A("s_add_u32 s28, s28, s27")
    A("s_add_u32 s28, s28, 192")
    A("s_lshl_b32 s28, s28, 13")
    A("s_lshl_b32 s31, s27, 13")
    A(f"s_add_u32 s31, s31, {KL}")
    A("s_mov_b32 s10, 0x10000000")
    A("s_mov_b32 s11, 0x20000")
    A("s_mov_b32 s14, 0x4000000")
    A("s_mov_b32 s15, 0x20000")
    A("v_xor_b32 v4, v1, v2")
    A("v_lshlrev_b32 v4, 4, v4")
    A("v_lshl_add_u32 v4, v2, 8, v4")
    A("v_xor_b32 v5, 64, v4")
    A("v_xor_b32 v6, 0x80, v4")
    A("v_xor_b32 v7, 0xc0, v4")
    A("v_lshlrev_b32 v8, 4, v1")
    A("v_lshl_add_u32 v8, v2, 10, v8")
    if stamps:
        for i in range(66, 96, 2): A(f"s_mov_b64 s[{i}:{i+1}], 0")
    A("s_mov_b32 s22, s31")
    A("s_mov_b32 s23, s28")
    A("s_waitcnt lgkmcnt(0)")
    A("s_barrier")
    A(f"s_mov_b64 s[8:9], s[{P_WS}:{P_WS+1}]")
    stamp(1)
    A("s_cmp_ge_u32 s5, 24")
    A("s_cbranch_scc1 L_nonatt")
    A("s_cmp_ge_u32 s3, 5")
    A("s_cbranch_scc1 L_vwave")
    A("s_cmp_eq_u32 s3, 0")
    A("s_cbranch_scc1 L_w0")
    A("s_setprio 2")
    A(f"s_mov_b64 s[12:13], s[{P_K}:{P_K+1}]")
    A.label("L_a_kloop")
    for h in range(2):
        A("s_mov_b32 m0, s22")
        A(f"s_add_u32 s22, s22, {4096 if h == 0 else 28672}")
        for j in range(4):
            A(f"buffer_load_dwordx4 v{4+j}, s[12:15], s23 offen offset:{j*1024} {o['kf']} lds")
        A(f"s_add_u32 s23, s23, {4096 if h == 0 else 28672}")
    A("s_add_u32 s27, s27, 4")
    A("s_cmp_lt_u32 s27, s29")
    A("s_cbranch_scc1 L_a_kloop")
    A("s_branch L_a_kdone")
    A.label("L_vwave")
    A("s_setprio 1")
    A("s_cmp_ge_u32 s27, s29")
    A(f"s_cbranch_scc1 {EXIT}")
    A(f"s_mov_b64 s[12:13], s[{P_V}:{P_V+1}]")
    A("s_cmp_eq_u32 s3, 14")
    A("s_cbranch_scc1 L_v_hello")
    A.label("L_v_ld")
    A("s_add_u32 s27, s28, 4096")
    VV = 12
    for t in range(8):
        A(f"buffer_load_dwordx4 v[{VV+4*t}:{VV+4*t+3}], v8, s[12:15], {'s28' if t < 4 else 's27'} offen offset:{(t&3)*256} {o['vf']}")
    A("s_branch L_v_go")
    A.label("L_w0")
    A("s_setprio 3")
    if o["wqpf"]:
        srd(12, P_WQ, 0x400000)
        A("v_lshrrev_b32 v9, 3, v0")
        A("v_and_b32 v10, 7, v0")
        A("v_lshlrev_b32 v10, 7, v10")
        A("v_lshl_add_u32 v9, v9, 13, v10")
        A("s_lshl_b32 s27, s6, 3")
        A("s_add_u32 s27, s27, s7")
        A("s_add_u32 s27, s27, 2")
        A("s_lshl_b32 s27, s27, 17")
        A("s_lshl_b32 s29, s4, 10")
        A("s_add_u32 s27, s27, s29")
        A(f"buffer_load_dword v10, v9, s[12:15], s27 offen {o['wf']}")
        A("s_add_u32 s27, s27, 0x10000")
        A(f"buffer_load_dword v11, v9, s[12:15], s27 offen {o['wf']}")
    tag_issue()
    A("s_branch L_w0_go")
    A.label("L_nonatt")
    A("s_sub_u32 s21, s5, 24")
    A("s_cmp_gt_u32 s3, 3")
    A("s_cbranch_scc1 L_na_other")
    A("s_setprio 3")
    srd(16, P_X, 0x1000)
    srd(12, P_WQ, 0x400000)
    A("s_lshl_b32 s27, s3, 8")
    A("v_lshl_add_u32 v4, v1, 4, s27")
    A("v_lshl_add_u32 v4, v2, 10, v4")
    A(f"buffer_load_dwordx4 v[8:11], v4, s[16:19], 0 offen {o['wf']}")
    A("v_xor_b32 v5, 0x100, v4")
    A(f"buffer_load_dwordx4 v[12:15], v5, s[16:19], 0 offen {o['wf']}")
    A("v_xor_b32 v5, 0x200, v4")
    A(f"buffer_load_dwordx4 v[16:19], v5, s[16:19], 0 offen {o['wf']}")
    A("v_xor_b32 v5, 0x300, v4")
    A(f"buffer_load_dwordx4 v[20:23], v5, s[16:19], 0 offen {o['wf']}")
    tag_issue()
    A("v_lshrrev_b32 v104, 3, v0")
    A("v_and_b32 v105, 7, v0")
    A("v_and_b32 v106, 2, v104")
    A("v_xor_b32 v105, v105, v106")
    A("v_lshlrev_b32 v105, 4, v105")
    A("v_lshl_add_u32 v104, v104, 13, v105")
    A("v_xor_b32 v105, 64, v104")
    A("s_lshl_b32 s27, s3, 20")
    A("s_lshl_b32 s28, s4, 10")
    A("s_add_u32 s27, s27, s28")
    A("s_lshl_b32 s28, s21, 7")
    A("s_add_u32 s27, s27, s28")
    A("s_lshl_b32 s31, s3, 14")
    A(f"s_add_u32 s31, s31, {GATE}")
    A("s_mov_b32 s22, s31")
    A("s_mov_b32 s23, 0")
    A.label("L_qdma")
    for i in range(2):
        A("s_mov_b32 m0, s22")
        A("s_add_u32 s22, s22, 1024")
        A(f"buffer_load_dwordx4 v{104+i}, s[12:15], s27 offen {o['wf']} lds")
        A("s_add_u32 s27, s27, 0x10000")
    A("s_add_u32 s23, s23, 1")
    A("s_cmp_lt_u32 s23, 8")
    A("s_cbranch_scc1 L_qdma")
    stamp(2)
    A("s_mov_b32 s23, 0xffff0000")
    A("s_waitcnt vmcnt(16)")
    stamp(3)
    XF = 24
    for i in range(16):
        A(f"v_lshlrev_b32 v{XF+2*i}, 16, v{8+i}")
        A(f"v_and_b32 v{XF+2*i+1}, s23, v{8+i}")
    tag_fin()
    for i in range(8): A(f"v_pk_add_f32 v[{56+2*i}:{57+2*i}], v[{XF+2*i}:{XF+2*i+1}], v[{XF+16+2*i}:{XF+17+2*i}]")
    for i in range(4): A(f"v_pk_add_f32 v[{56+2*i}:{57+2*i}], v[{56+2*i}:{57+2*i}], v[{64+2*i}:{65+2*i}]")
    for i in range(2): A(f"v_pk_add_f32 v[{56+2*i}:{57+2*i}], v[{56+2*i}:{57+2*i}], v[{60+2*i}:{61+2*i}]")
    A("v_pk_add_f32 v[56:57], v[56:57], v[58:59]")
    A("v_add_f32 v56, v56, v57")
    rowsum(56)
    A("v_mul_f32 v72, 0x3b000000, v56")
    for i in range(16):
        t = 56 + 2*(i & 3)
        A(f"v_pk_add_f32 v[{t}:{t+1}], v[{XF+2*i}:{XF+2*i+1}], v[72:73] op_sel_hi:[1,0] neg_lo:[0,1] neg_hi:[0,1]")
        a = 74 + 2*(i & 1)
        if i < 2: A(f"v_pk_mul_f32 v[{a}:{a+1}], v[{t}:{t+1}], v[{t}:{t+1}]")
        else: A(f"v_pk_fma_f32 v[{a}:{a+1}], v[{t}:{t+1}], v[{t}:{t+1}], v[{a}:{a+1}]")
    A("v_pk_add_f32 v[74:75], v[74:75], v[76:77]")
    A("v_add_f32 v74, v74, v75")
    rowsum(74)
    A("v_mul_f32 v74, 0x3b000000, v74")
    A("v_cvt_pk_bf16_f32 v75, v72, v74")
    A("v_lshlrev_b32 v72, 16, v75")
    A("v_and_b32 v74, s23, v75")
    A(f"v_add_f32 v74, {EPS:#x}, v74")
    A("v_cvt_pk_bf16_f32 v74, v74, v74")
    A("v_and_b32 v74, s23, v74")
    A("v_sqrt_f32 v74, v74")
    A("v_cvt_pk_bf16_f32 v74, v74, v74")
    A("v_and_b32 v74, s23, v74")
    A("v_rcp_f32 v74, v74")
    for i in range(4):
        A(f"v_pk_add_f32 v[{XF+2*i}:{XF+2*i+1}], v[{XF+2*i}:{XF+2*i+1}], v[72:73] op_sel_hi:[1,0] neg_lo:[0,1] neg_hi:[0,1]")
    for i in range(4): A(f"v_cvt_pk_bf16_f32 v{8+i}, v{XF+2*i}, v{XF+2*i+1}")
    for i in range(4):
        A(f"v_lshlrev_b32 v{XF+2*i}, 16, v{8+i}")
        A(f"v_and_b32 v{XF+2*i+1}, s23, v{8+i}")
    for i in range(4):
        A(f"v_pk_mul_f32 v[{XF+2*i}:{XF+2*i+1}], v[{XF+2*i}:{XF+2*i+1}], v[74:75] op_sel_hi:[1,0]")
    for i in range(4): A(f"v_cvt_pk_bf16_f32 v{8+i}, v{XF+2*i}, v{XF+2*i+1}")
    A("s_lshl_b32 s27, s3, 10")
    A("v_lshl_add_u32 v7, v0, 4, s27")
    A(f"ds_write_b128 v7, v[8:11] offset:{XN}")
    A("v_bfe_u32 v12, v0, 2, 2")
    A("v_lshl_add_u32 v5, v12, 8, s27")
    A("v_lshl_add_u32 v5, v2, 4, v5")
    XA = 72
    for ks in range(4): A(f"ds_read_b128 v[{XA+4*ks}:{XA+4*ks+3}], v5 offset:{XN+64*ks}")
    A("v_and_b32 v13, 3, v0")
    A("v_lshlrev_b32 v104, 10, v2")
    A("v_lshl_add_u32 v104, v12, 7, v104")
    A("v_lshl_add_u32 v104, v13, 3, v104")
    A("v_lshrrev_b32 v12, 1, v12")
    A("v_and_b32 v14, 1, v2")
    A("v_lshl_add_u32 v12, v14, 1, v12")
    A("v_lshl_add_u32 v104, v12, 5, v104")
    A("v_add_u32 v104, s31, v104")
    A("v_xor_b32 v105, 32, v104")
    A("v_xor_b32 v106, 64, v104")
    A("v_xor_b32 v107, 0x60, v104")
    ctl_base(27)
    A("s_lshl_b32 s28, s21, 8")
    A("s_add_u32 s27, s27, s28")
    A("v_lshlrev_b32 v5, 4, v1")
    A("v_lshl_add_u32 v5, v2, 11, v5")
    stamp(4)
    DQ = 56
    def q_reads(ks):
        A(f"s_waitcnt vmcnt({12-4*ks})")
        for tau in range(4):
            r = 8 + 16*(ks & 1) + 4*tau
            A(f"ds_read_b64_tr_b16 v[{r}:{r+1}], v{104+tau} offset:{ks*4096}")
            A(f"ds_read_b64_tr_b16 v[{r+2}:{r+3}], v{104+tau} offset:{ks*4096+512}")
    q_reads(0)
    for ks in range(4):
        A("s_waitcnt lgkmcnt(0)")
        if ks < 3: q_reads(ks + 1)
        for tau in range(4):
            r = 8 + 16*(ks & 1) + 4*tau
            d = DQ + 4*tau
            A(f"v_mfma_f32_16x16x32_bf16 v[{d}:{d+3}], v[{XA+4*ks}:{XA+4*ks+3}], v[{r}:{r+3}], {'0' if ks == 0 else f'v[{d}:{d+3}]'}")
    for tau in range(1, 4): A(f"v_mov_b32 v{DQ+tau}, v{DQ+4*tau}")
    A(f"ds_write_b128 v7, v[{DQ}:{DQ+3}] offset:{QP}")
    A("v_mov_b32 v8, 1")
    A("s_mov_b64 exec, 1")
    A(f"ds_add_u32 v3, v8 offset:{ACNT}")
    A("s_mov_b64 exec, -1")
    stamp(5)
    A("s_cmp_lg_u32 s3, 0")
    A("s_cbranch_scc1 L_ffn")
    spin_head("L_qp_spin", "L_qp_ok")
    A(f"ds_read_b32 v8, v3 offset:{ACNT}")
    for k in range(1, 4): A(f"ds_read_b128 v[{8+4*k}:{11+4*k}], v7 offset:{QP+1024*k}")
    A("s_waitcnt lgkmcnt(0)")
    A("v_readfirstlane_b32 s28, v8")
    A("s_cmp_lt_u32 s28, 4")
    A("s_cbranch_scc1 L_qp_spin")
    A.label("L_qp_ok")
    for i in range(2):
        A(f"v_pk_add_f32 v[{DQ+2*i}:{DQ+2*i+1}], v[{DQ+2*i}:{DQ+2*i+1}], v[{12+2*i}:{13+2*i}]")
        A(f"v_pk_add_f32 v[{16+2*i}:{17+2*i}], v[{16+2*i}:{17+2*i}], v[{20+2*i}:{21+2*i}]")
    for i in range(2):
        A(f"v_pk_add_f32 v[{DQ+2*i}:{DQ+2*i+1}], v[{DQ+2*i}:{DQ+2*i+1}], v[{16+2*i}:{17+2*i}]")
    A(f"v_cvt_pk_bf16_f32 v8, v{DQ}, v{DQ+1}")
    A(f"v_cvt_pk_bf16_f32 v10, v{DQ+2}, v{DQ+3}")
    A("v_mov_b32 v9, s24")
    A("v_mov_b32 v11, s24")
    dual_store("buffer_store_dwordx4 v[8:11], v5, s[8:11], s27 offen", 27)
    stamp(6)
    A("s_branch L_ffn")

    A.label("L_v_hello")
    A("s_setprio 3")
    tag_issue()
    hello(10)
    A("s_setprio 1")
    A("s_branch L_v_ld")

    A.label("L_na_other")
    A("s_cmp_lt_u32 s3, 8")
    A("s_cbranch_scc1 L_ffn")
    A("v_lshlrev_b32 v5, 4, v0")
    for i in range(4): A(f"v_mov_b32 v{8+i}, -1")
    A("s_cmp_eq_u32 s3, 8")
    A("s_cbranch_scc1 L_clr_gl")
    A("s_cmp_eq_u32 s3, 9")
    A("s_cbranch_scc1 L_clr_cd")
    if o["prefetch"]:
        A("s_cmp_eq_u32 s3, 14")
        A("s_cbranch_scc1 L_pref")
    A("s_cmp_eq_u32 s3, 15")
    A("s_cbranch_scc1 L_na_w15")
    A("s_endpgm")
    A.label("L_clr_gl")
    A("s_setprio 3")
    tag_issue()
    A("s_lshl_b32 s28, s4, 3")
    A("s_add_u32 s28, s28, s21")
    A("s_lshl_b32 s28, s28, 12")
    A(f"s_add_u32 s28, s28, {GL}")
    for j in range(4): A(f"buffer_store_dwordx4 v[8:11], v5, s[8:11], s28 offen offset:{1024*j} sc1")
    A("v_lshlrev_b32 v6, 6, v0")
    A("s_waitcnt vmcnt(0)")
    stamp(5)
    hello(12)
    A("buffer_load_dword v14, v6, s[8:11], s28 offen sc1")
    end()
    A.label("L_clr_cd")
    tag_issue()
    spin_head("L_cd_spin", "L_cd_go")
    A("s_sleep 8")
    A(f"ds_read_b32 v12, v3 offset:{ACNT}")
    A("s_waitcnt lgkmcnt(0)")
    A("v_readfirstlane_b32 s28, v12")
    A("s_cmp_lt_u32 s28, 4")
    A("s_cbranch_scc1 L_cd_spin")
    A.label("L_cd_go")
    A("s_lshl_b32 s27, s21, 4")
    A("s_add_u32 s27, s27, s4")
    A("s_lshl_b32 s27, s27, 10")
    A(f"s_add_u32 s27, s27, {CR}")
    A("buffer_store_dwordx4 v[8:11], v5, s[8:11], s27 offen sc1")
    A("s_add_u32 s27, s27, 8192")
    A("buffer_store_dwordx4 v[8:11], v5, s[8:11], s27 offen sc1")
    A("s_cmp_eq_u32 s5, 31")
    A("s_cbranch_scc1 L_clr_done")
    A("s_mul_i32 s27, s4, 7")
    A("s_add_u32 s27, s27, s21")
    A("s_lshl_b32 s27, s27, 7")
    A(f"s_add_u32 s27, s27, {DR}")
    A("v_lshrrev_b32 v7, 3, v0")
    A(f"v_mul_u32_u24 v7, {DRS}, v7")
    A("v_and_b32 v12, 7, v0")
    A("v_lshl_add_u32 v7, v12, 4, v7")
    for w in range(8):
        A("buffer_store_dwordx4 v[8:11], v7, s[8:11], s27 offen sc1")
        if w < 7: A(f"s_add_u32 s27, s27, {8*DRS}")
    A.label("L_clr_done")
    tag_fin()
    A("v_mov_b32 v12, s24")
    A("s_lshl_b32 s27, s4, 3")
    A("s_add_u32 s27, s27, s21")
    A("s_lshl_b32 s27, s27, 2")
    A(f"s_add_u32 s27, s27, {H2}")
    A("s_waitcnt vmcnt(0)")
    stamp(5)
    A("s_mov_b64 exec, 1")
    A("buffer_store_dword v12, v3, s[8:11], s27 offen sc1")
    A("s_mov_b64 exec, -1")
    end()
    A.label("L_na_w15")
    tag_issue()
    ctl_base(29)
    A("s_getreg_b32 s25, hwreg(HW_REG_XCC_ID, 0, 4)")
    A("v_lshrrev_b32 v6, 5, v0")
    A(f"v_mul_u32_u24 v6, {QG}, v6")
    A("s_cmp_eq_u32 s5, 31")
    A("s_cbranch_scc0 L_h_ffn")
    A("v_lshlrev_b32 v7, 7, v0")
    A("buffer_load_dword v14, v7, s[8:11], s29 offen sc1")
    A(f"buffer_load_dword v15, v3, s[8:11], s29 offen offset:0 sc1".replace("v3, s[8:11], s29 offen offset:0", "v5, s[8:11], s29 offen offset:0") if False else "v_add_u32 v7, 0x2000, v5")
    A("buffer_load_dword v15, v7, s[8:11], s29 offen sc1")
    A("v_and_b32 v7, 31, v0")
    A("v_lshl_add_u32 v7, v7, 3, v6")
    A(f"v_add_u32 v7, {HL_O}, v7")
    tag_fin()
    spin_head("L_h_poll", "L_h_ok")
    A("buffer_load_dwordx2 v[14:15], v7, s[8:11], s29 offen sc1")
    A("s_waitcnt vmcnt(0)")
    A("v_cmp_eq_u32 vcc, s24, v15")
    A("s_or_b32 s27, vcc_lo, vcc_hi")
    A("s_cmp_lg_u32 s27, -1")
    A("s_cbranch_scc1 L_h_poll")
    A.label("L_h_ok")
    stamp(3)
    A("v_cmp_ne_u32 s[16:17], s25, v14")
    A("s_and_b64 s[16:17], s[16:17], vcc")
    A("s_cselect_b32 s26, 1, 2")
    A("v_mov_b32 v12, s26")
    A("v_mov_b32 v13, s24")
    A(f"s_add_u32 s29, s29, {GS_O}")
    A("s_mov_b64 exec, 1")
    dual_store("buffer_store_dwordx2 v[12:13], v3, s[8:11], s29 offen", 29)
    A("s_mov_b64 exec, -1")
    end()
    A.label("L_h_ffn")
    A(f"s_add_u32 s29, s29, {GS_O}")
    tag_fin()
    spin_head("L_gs_poll", "L_gs_ok")
    A("buffer_load_dwordx2 v[14:15], v6, s[8:11], s29 offen sc1")
    A("s_waitcnt vmcnt(0)")
    A("v_cmp_eq_u32 vcc, s24, v15")
    A("s_cbranch_vccz L_gs_poll")
    A.label("L_gs_ok")
    stamp(3)
    if o["trigger"] == "stats":
        A("s_lshl_b32 s29, s4, 15")
        A(f"s_add_u32 s29, s29, {GL+BS_O}")
        spin_head("L_t_poll", "L_t_ok")
        A("buffer_load_dwordx4 v[14:17], v5, s[8:11], s29 offen sc1")
        A("s_waitcnt vmcnt(0)")
        A("v_min_u32 v14, v14, v16")
        A("v_cmp_ne_u32 vcc, -1, v14")
        A("s_cbranch_vccz L_t_poll")
        A.label("L_t_ok")
        stamp(4)
    A("v_mov_b32 v12, 1")
    A(f"ds_write_b32 v3, v12 offset:{QFLAG}")
    end()
    if o["prefetch"]:
        A.label("L_pref")
        A("s_getpc_b64 s[56:57]")
        A.label("L_pc")
        A(f"s_sub_u32 s56, s56, L_pc-{KNAME}")
        A("s_subb_u32 s57, s57, 0")
        A("v_lshlrev_b32 v4, 7, v0")
        A(f"s_mov_b32 s27, L_code_end-{KNAME}-4")
        for i in range(2):
            A(f"v_add_u32 v5, {8192*i}, v4")
            A("v_min_u32 v5, s27, v5")
            A(f"global_load_dword v{8+i}, v5, s[56:57]")
        A("s_endpgm")

    A.label("L_v_go")
    stamp(2)
    A("v_lshl_add_u32 v5, v0, 4, s31")
    A("v_lshl_add_u32 v6, v0, 2, s31")
    A("s_mov_b32 s16, 0x05040100")
    A("s_mov_b32 s17, 0x07060302")
    if o["probev"]:
        A("s_waitcnt vmcnt(0)")
        stamp(5)
    A("s_barrier")
    stamp(3)
    PF = 8
    BE = 44
    DE = 76
    A(f"ds_read_b128 v[{PF}:{PF+3}], v5")
    for i in range(3):
        A(f"s_waitcnt vmcnt({6-2*i})")
        for e in range(8):
            A(f"v_perm_b32 v{BE+4*e+i}, v{VV+4*(2*i+1)+(e>>1)}, v{VV+4*(2*i)+(e>>1)}, s{16+(e&1)}")
    A("s_waitcnt vmcnt(0) lgkmcnt(0)")
    stamp(4)
    A("s_setprio 3")
    def perm3(e): A(f"v_perm_b32 v{BE+4*e+3}, v{VV+28+(e>>1)}, v{VV+24+(e>>1)}, s{16+(e&1)}")
    def pv(e): A(f"v_mfma_f32_16x16x32_bf16 v[{DE+4*e}:{DE+4*e+3}], v[{PF}:{PF+3}], v[{BE+4*e}:{BE+4*e+3}], 0")
    perm3(0); perm3(1); perm3(2)
    for e in range(8):
        pv(e)
        if e + 3 < 8: perm3(e + 3)
    for ep in range(4):
        A(f"ds_write2st64_b32 v6, v{DE+8*ep}, v{DE+8*ep+4} offset0:{4+2*ep} offset1:{5+2*ep}")
    end()

    A.label("L_a_kdone")
    A("v_mov_b32 v109, 1")
    A("s_mov_b64 exec, 1")
    A(f"ds_add_u32 v3, v109 offset:{KCNT}")
    A("s_mov_b64 exec, -1")
    stamp(2)
    QF = 8
    KF = 24
    SC = 56
    T0 = 80
    ONES = 96
    LS = 100
    A("s_sub_u32 s29, s29, s3")
    A("s_sub_u32 s19, s3, 1")
    A("v_xor_b32 v4, v1, v2")
    A("v_lshlrev_b32 v4, 4, v4")
    A("v_lshl_add_u32 v4, v1, 8, v4")
    A("v_add_u32 v4, s31, v4")
    A("v_xor_b32 v5, 64, v4")
    A("v_xor_b32 v6, 0x80, v4")
    A("v_xor_b32 v7, 0xc0, v4")
    A("v_lshrrev_b32 v104, 2, v1")
    A("v_lshlrev_b32 v105, 8, v104")
    A("v_lshl_add_u32 v105, v2, 4, v105")
    A("v_lshlrev_b32 v104, 4, v104")
    A("s_lshl_b32 s27, s19, 2")
    A("v_add_u32 v108, s27, v104")
    A("v_lshl_add_u32 v106, v0, 4, s31")
    A("s_lshl_b32 s27, s19, 8")
    A("v_lshl_add_u32 v107, v0, 2, s27")
    for i in range(4): A(f"v_mov_b32 v{ONES+i}, 0x3f803f80")
    A("s_mov_b32 s16, 0xffff0000")
    A(f"s_mov_b32 s17, {SCALE:#x}")
    A(f"s_mov_b32 s18, {LOG2E:#x}")
    spin_head("L_a_qspin", "L_a_qok")
    A(f"ds_read_b32 v110, v3 offset:{QFLAG}")
    A("s_waitcnt lgkmcnt(0)")
    A("v_readfirstlane_b32 s27, v110")
    A("s_cmp_lg_u32 s27, 0")
    A("s_cbranch_scc1 L_a_qok")
    A("s_sleep 2")
    A("s_branch L_a_qspin")
    A.label("L_a_qok")
    stamp(3)
    for d in range(4): A(f"ds_read_b128 v[{QF+4*d}:{QF+4*d+3}], v105 offset:{QL+64*d}")
    A("s_waitcnt vmcnt(0)")
    stamp(4)
    def qk_unit(u):
        off = (u & 1) * 32768
        for tau in range(2):
            for d in range(4):
                r = KF + 16*tau + 4*d
                A(f"ds_read_b128 v[{r}:{r+3}], v{4+d} offset:{off + tau*4096}")
        A("s_waitcnt lgkmcnt(0)")
        for d in range(4):
            for tau in range(2):
                r = KF + 16*tau + 4*d
                s = SC + 8*u + 4*tau
                A(f"v_mfma_f32_16x16x32_bf16 v[{s}:{s+3}], v[{r}:{r+3}], v[{QF+4*d}:{QF+4*d+3}], {'0' if d == 0 else f'v[{s}:{s+3}]'}")
    def round_unit(u):
        s = SC + 8*u
        for i in range(4): A(f"v_cvt_pk_bf16_f32 v{T0+i}, v{s+2*i}, v{s+2*i+1}")
        for i in range(4):
            A(f"v_lshlrev_b32 v{s+2*i}, 16, v{T0+i}")
            A(f"v_and_b32 v{s+2*i+1}, s16, v{T0+i}")
        for i in range(8): A(f"v_mul_f32 v{s+i}, s17, v{s+i}")
        for i in range(4): A(f"v_cvt_pk_bf16_f32 v{T0+i}, v{s+2*i}, v{s+2*i+1}")
        for i in range(4):
            A(f"v_lshlrev_b32 v{s+2*i}, 16, v{T0+i}")
            A(f"v_and_b32 v{s+2*i+1}, s16, v{T0+i}")
    qk_unit(0)
    qk_unit(1)
    round_unit(0)
    round_unit(1)
    max_tree(110, range(SC, SC+16), "v_max3_f32", "v_max_f32")
    A("s_cmp_le_u32 s29, 7")
    A("s_cbranch_scc1 L_a_no3a")
    for d in range(4): A(f"v_add_u32 v{4+d}, 0x10000, v{4+d}")
    qk_unit(2)
    round_unit(2)
    for i in range(4): A(f"v_max3_f32 v110, v110, v{SC+16+2*i}, v{SC+17+2*i}")
    A.label("L_a_no3a")
    A("v_mov_b32 v111, v110")
    A("v_permlane32_swap_b32 v110, v111")
    A("v_max_f32 v110, v110, v111")
    A("v_mov_b32 v111, v110")
    A("v_permlane16_swap_b32 v110, v111")
    A("v_max_f32 v110, v110, v111")
    A(f"ds_write_b32 v108, v110 offset:{MAXA}")
    A("s_mov_b64 exec, 1")
    A(f"ds_add_u32 v3, v109 offset:{ACNT}")
    A("s_mov_b64 exec, -1")
    spin_head("L_a_mspin", "L_a_mok")
    A(f"ds_read_b32 v111, v3 offset:{ACNT}")
    A(f"ds_read_b128 v[112:115], v104 offset:{MAXA}")
    A("s_waitcnt lgkmcnt(0)")
    A("v_readfirstlane_b32 s27, v111")
    A("s_cmp_lt_u32 s27, 4")
    A("s_cbranch_scc1 L_a_mspin")
    A.label("L_a_mok")
    A("v_max3_f32 v110, v112, v113, v114")
    A("v_max_f32 v110, v110, v115")
    def p_unit(u):
        s = SC + 8*u
        for i in range(8): A(f"v_sub_f32 v{s+i}, v{s+i}, v110")
        for i in range(8): A(f"v_mul_f32 v{s+i}, s18, v{s+i}")
        for i in range(8): A(f"v_exp_f32 v{s+i}, v{s+i}")
        t = T0 + 4*u
        for i in range(4): A(f"v_cvt_pk_bf16_f32 v{t+i}, v{s+2*i}, v{s+2*i+1}")
        if u == 2: A("v_add_u32 v106, 0x10000, v106")
        A(f"ds_write_b128 v106, v[{t}:{t+3}] offset:{(u&1)*32768}")
        A(f"v_mfma_f32_16x16x32_bf16 v[{LS}:{LS+3}], v[{t}:{t+3}], v[{ONES}:{ONES+3}], {'0' if u == 0 else f'v[{LS}:{LS+3}]'}")
    p_unit(0)
    p_unit(1)
    A("s_cmp_le_u32 s29, 7")
    A("s_cbranch_scc1 L_a_no3b")
    p_unit(2)
    A.label("L_a_no3b")
    A("s_nop 7")
    A(f"ds_write_b32 v107, v{LS} offset:{LACC}")
    A("s_lshl_b32 s20, s6, 2")
    A("s_add_u32 s20, s20, s7")
    A("s_lshr_b32 s21, s20, 1")
    A("s_and_b32 s20, s20, 1")
    srd(12, P_WO, 0x400000)
    A("v_lshrrev_b32 v4, 3, v0")
    A("v_and_b32 v5, 7, v0")
    A("v_lshlrev_b32 v5, 4, v5")
    A("v_lshl_add_u32 v4, v4, 10, v5")
    A("v_xor_b32 v5, 32, v4")
    A("v_xor_b32 v6, 64, v4")
    A("v_xor_b32 v7, 0x60, v4")
    A("s_lshl_b32 s27, s4, 1")
    A("s_add_u32 s27, s27, s20")
    A("s_lshl_b32 s27, s27, 2")
    A("s_add_u32 s27, s27, s19")
    A("s_lshl_b32 s27, s27, 16")
    A("s_lshl_b32 s22, s21, 7")
    A("s_add_u32 s27, s27, s22")
    A("s_lshl_b32 s22, s19, 13")
    A(f"s_add_u32 s22, s22, {WL}")
    A("s_lshl_b32 s23, s19, 9")
    A(f"s_add_u32 s23, s23, {KL+1024}")
    A("v_lshl_add_u32 v108, v0, 2, s23")
    A("v_add_u32 v109, 0x10000, v108")
    A("s_lshl_b32 s31, s4, 15")
    A(f"s_add_u32 s31, s31, {GL}")
    A("s_lshl_b32 s23, s5, 10")
    A("s_add_u32 s23, s23, s31")
    A("s_waitcnt lgkmcnt(0)")
    stamp(5)
    A("s_barrier")
    stamp(6)
    A("s_cmp_ge_u32 s7, 4")
    A("s_cbranch_scc1 L_a_nowo")
    A("s_setprio 0")
    for i in range(8):
        A("s_mov_b32 m0, s22")
        A("s_add_u32 s22, s22, 1024")
        A(f"buffer_load_dwordx4 v{4 + (i&1) + 2*((i>>2)&1)}, s[12:15], s27 offen {o['wf']} lds")
        A("s_add_u32 s27, s27, 8192")
    stamp(7)
    A("s_lshr_b32 s25, s19, 1")
    A("s_and_b32 s22, s19, 1")
    A("v_bfe_u32 v8, v0, 2, 2")
    A("v_and_b32 v9, 3, v0")
    A("v_lshlrev_b32 v4, 12, v2")
    A("v_lshrrev_b32 v10, 1, v8")
    A("v_mul_u32_u24 v11, 1056, v10")
    A("v_add_u32 v4, v4, v11")
    A("v_and_b32 v10, 1, v8")
    A("v_lshl_add_u32 v4, v10, 7, v4")
    A("v_lshl_add_u32 v4, v9, 3, v4")
    A("v_and_b32 v10, 1, v2")
    A("v_lshl_add_u32 v4, v10, 6, v4")
    A("s_lshl_b32 s27, s25, 14")
    A(f"s_add_u32 s27, s27, {WL}")
    A("v_add_u32 v4, s27, v4")
    A("v_xor_b32 v5, 32, v4")
    A("v_xor_b32 v6, 64, v4")
    A("v_xor_b32 v7, 0x60, v4")
    A("v_mul_u32_u24 v8, 6, v8")
    A("v_min_u32 v9, 2, v9")
    A("v_add_u32 v8, v8, v9")
    A("v_lshlrev_b32 v8, 10, v8")
    A("v_lshl_add_u32 v104, v2, 4, v8")
    A("s_lshl_b32 s27, s20, 1")
    A("s_add_u32 s27, s27, s25")
    A("s_lshl_b32 s27, s27, 6")
    A("s_add_u32 s27, s27, s31")
    A("s_mul_i32 s28, s22, 3072")
    A("s_add_u32 s28, s28, s27")
    A(f"s_add_u32 s29, s27, {BS_O}")
    A("s_lshl_b32 s27, s22, 5")
    A("v_lshl_add_u32 v105, v2, 8, s27")
    A("v_xor_b32 v106, 32, v105")
    A("s_lshl_b32 s27, s19, 10")
    A("v_lshl_add_u32 v110, v0, 4, s27")
    A.label("L_a_nowo")
    A(f"ds_read_b32 v32, v3 offset:{LFLAG}")
    A("s_setprio 3")
    A("s_waitcnt lgkmcnt(0)")
    A("v_readfirstlane_b32 s26, v32")
    A("v_mov_b32 v32, 0")
    A("v_mov_b32 v33, 0")
    A("s_barrier")
    for u in range(8):
        A(f"ds_read2st64_b32 v[{12+2*u}:{13+2*u}], v108 offset0:{32*u} offset1:{32*u+1}")
    for u in range(2):
        A(f"ds_read2st64_b32 v[{28+2*u}:{29+2*u}], v109 offset0:{32*u} offset1:{32*u+1}")
    A("s_cmp_ge_u32 s7, 4")
    A("s_cbranch_scc1 L_a_o10")
    A("ds_read2st64_b32 v[32:33], v109 offset0:64 offset1:65")
    A.label("L_a_o10")
    A("s_waitcnt lgkmcnt(0)")
    for i in range(5): A(f"v_pk_add_f32 v[{12+2*i}:{13+2*i}], v[{12+2*i}:{13+2*i}], v[{24+2*i}:{25+2*i}]")
    for i in range(3): A(f"v_pk_add_f32 v[{12+2*i}:{13+2*i}], v[{12+2*i}:{13+2*i}], v[{18+2*i}:{19+2*i}]")
    A("v_pk_add_f32 v[12:13], v[12:13], v[14:15]")
    A("v_pk_add_f32 v[12:13], v[12:13], v[16:17]")
    A("v_cvt_pk_bf16_f32 v12, v12, v13")
    A("v_min_u32 v12, -2, v12")
    lstore("buffer_store_dword v12, v107, s[8:11], s23 offen")
    stamp(8)
    A("s_cmp_ge_u32 s7, 4")
    A(f"s_cbranch_scc1 {EXIT}")
    A("s_waitcnt vmcnt(1)")
    stamp(9)
    A("s_barrier")
    AF = 8
    ST = 24
    BF = 36
    DW = 112
    def wo_poll():
        for ks in range(4):
            A(f"buffer_load_dwordx4 v[{AF+4*ks}:{AF+4*ks+3}], v104, s[8:11], s28 offen offset:{256*ks} sc1")
        A(f"buffer_load_dwordx4 v[{ST}:{ST+3}], v105, s[8:11], s29 offen sc1")
        A(f"buffer_load_dwordx2 v[{ST+4}:{ST+5}], v105, s[8:11], s29 offen offset:16 sc1")
        A(f"buffer_load_dwordx4 v[{ST+8}:{ST+11}], v106, s[8:11], s29 offen sc1")
        A(f"buffer_load_dwordx2 v[{ST+6}:{ST+7}], v106, s[8:11], s29 offen offset:16 sc1")
    wo_poll()
    for ks in range(4):
        for tau in range(4):
            r = BF + 16*ks + 4*tau
            A(f"ds_read_b64_tr_b16 v[{r}:{r+1}], v{4+tau} offset:{ks*256}")
            A(f"ds_read_b64_tr_b16 v[{r+2}:{r+3}], v{4+tau} offset:{ks*256+2048}")
    A("s_mov_b32 s30, 0")
    A("s_branch L_wo_chk")
    A.label("L_wo_poll")
    A("s_add_u32 s30, s30, 1")
    A(f"s_cmp_gt_u32 s30, {SPIN}")
    A("s_cbranch_scc1 L_wo_go")
    wo_poll()
    A.label("L_wo_chk")
    A("s_waitcnt vmcnt(0)")
    max_tree(108, range(AF, AF+14))
    max_tree(109, range(AF+14, AF+28))
    A("v_max_u32 v108, v108, v109")
    A("v_cmp_eq_u32 vcc, -1, v108")
    A("s_cbranch_vccnz L_wo_poll")
    A.label("L_wo_go")
    A("s_waitcnt lgkmcnt(0)")
    stamp(10)
    mf = []
    for ks in range(4):
        for tau in range(4):
            r = BF + 16*ks + 4*tau
            d = DW + 4*tau
            mf.append(f"v_mfma_f32_16x16x32_bf16 v[{d}:{d+3}], v[{AF+4*ks}:{AF+4*ks+3}], v[{r}:{r+3}], {'0' if ks == 0 else f'v[{d}:{d+3}]'}")
    va = []
    va.append(f"v_max3_f32 v108, v{ST}, v{ST+2}, v{ST+4}")
    va.append(f"v_max3_f32 v109, v{ST+6}, v{ST+8}, v{ST+10}")
    va.append("v_max_f32 v108, v108, v109")
    for i in range(6): va.append(f"v_sub_f32 v{ST+2*i}, v{ST+2*i}, v108")
    for i in range(6): va.append(f"v_mul_f32 v{ST+2*i}, s18, v{ST+2*i}")
    for i in range(6): va.append(f"v_exp_f32 v{ST+2*i}, v{ST+2*i}")
    va.append(f"v_mul_f32 v109, v{ST}, v{ST+1}")
    for i in range(1, 6): va.append(f"v_fmac_f32 v109, v{ST+2*i}, v{ST+2*i+1}")
    va.append("v_rcp_f32 v109, v109")
    for i in range(3): va.append(f"v_mul_f32 v{ST+2*i}, v{ST+2*i}, v109")
    for i in range(16):
        A(mf[i])
        for k in range(2):
            if va: A(va.pop(0))
    while va: A(va.pop(0))
    for tau in range(4):
        d = DW + 4*tau
        A(f"v_mul_f32 v{100+tau}, v{ST}, v{d}")
        A(f"v_fmac_f32 v{100+tau}, v{ST+2}, v{d+1}")
        A(f"v_fmac_f32 v{100+tau}, v{ST+4}, v{d+2}")
    A(f"ds_write_b128 v110, v[100:103] offset:{CACC}")
    end()

    A.label("L_w0_go")
    A("v_lshlrev_b32 v5, 4, v0")
    A("v_add_u32 v7, 0x1000, v5")
    A("v_lshlrev_b32 v6, 2, v0")
    ctl_base(27)
    A("s_lshl_b32 s29, s6, 11")
    A("v_add_u32 v8, s29, v5")
    A(f"v_mov_b32 v47, {GS_O}")
    A("v_lshlrev_b32 v44, 1, v1")
    A("v_lshl_add_u32 v44, v2, 7, v44")
    A("s_lshl_b32 s31, s4, 15")
    A(f"s_add_u32 s31, s31, {GL}")
    A("s_mov_b32 s23, 0xffff0000")
    A("s_lshl_b32 s17, s6, 2")
    A("s_add_u32 s17, s17, s7")
    A("s_and_b32 s20, s17, 1")
    A("s_lshr_b32 s21, s17, 1")
    srd(12, P_X, 0x1000)
    A("s_lshl_b32 s19, s20, 11")
    A("s_lshl_b32 s28, s21, 7")
    A("s_add_u32 s19, s19, s28")
    A("v_and_b32 v104, 1, v2")
    A("v_lshlrev_b32 v104, 10, v104")
    A("v_lshrrev_b32 v9, 5, v0")
    A("v_lshl_add_u32 v104, v9, 6, v104")
    A("v_lshl_add_u32 v103, v1, 2, v104")
    A("v_lshl_add_u32 v104, v1, 1, v104")
    A("s_add_u32 s22, s19, s31")
    A(f"s_add_u32 s22, s22, {HR_O}")
    A("s_lshl_b32 s28, s21, 14")
    A("s_lshl_b32 s16, s4, 10")
    A("s_add_u32 s28, s28, s16")
    A("s_lshl_b32 s16, s20, 9")
    A("s_add_u32 s28, s28, s16")
    A(f"s_add_u32 s28, s28, {CR}")
    A("v_and_b32 v100, 31, v0")
    A("v_lshl_add_u32 v100, v100, 4, s28")
    A("v_lshl_add_u32 v100, v9, 13, v100")
    tag_fin()
    spin_head("L_k_spin", "L_k_ok")
    A(f"ds_read_b32 v45, v3 offset:{KCNT}")
    A("s_waitcnt lgkmcnt(0)")
    A("v_readfirstlane_b32 s16, v45")
    A(f"s_cmp_ge_u32 s16, {o['kcnt']}")
    A("s_cbranch_scc1 L_k_ok")
    A("s_sleep 4")
    A("s_branch L_k_spin")
    A.label("L_k_ok")
    stamp(2)
    A("s_mov_b32 s29, s27")
    def q_issue(base, so):
        A(f"buffer_load_dwordx4 v[{base}:{base+3}], v8, s[8:11], s{so} offen sc1")
        A(f"buffer_load_dwordx4 v[{base+4}:{base+7}], v8, s[8:11], s{so} offen offset:1024 sc1")
        A(f"buffer_load_dwordx2 v[{base+8}:{base+9}], v47, s[8:11], s{so} offen sc1")
    def q_check(base):
        A(f"v_xor_b32 v40, s24, v{base+1}")
        A(f"v_xor_b32 v41, s24, v{base+3}")
        A(f"v_xor_b32 v42, s24, v{base+5}")
        A("v_or3_b32 v40, v40, v41, v42")
        A(f"v_xor_b32 v41, s24, v{base+7}")
        A("v_or_b32 v40, v40, v41")
        A("v_cmp_ne_u32 vcc, 0, v40")
    q_issue(12, 27)
    A("s_sleep 8")
    spin_head("L_q_poll", "L_q_ok")
    q_issue(24, 29)
    A("s_waitcnt vmcnt(3)")
    q_check(12)
    A("s_cbranch_vccz L_q_ok")
    q_issue(12, 27)
    A("s_cmp_ge_u32 s30, 3")
    A(f"s_cselect_b32 s29, {QG}, 0")
    A("s_add_u32 s29, s29, s27")
    A("s_waitcnt vmcnt(3)")
    q_check(24)
    A("s_cbranch_vccnz L_q_poll")
    for i in range(10): A(f"v_mov_b32 v{48+i}, v{24+i}")
    A("s_branch L_q_ok2")
    A.label("L_q_ok")
    for i in range(10): A(f"v_mov_b32 v{48+i}, v{12+i}")
    A.label("L_q_ok2")
    for i in range(2):
        for p in range(2):
            r = 48 + 4*i + 2*p
            A(f"ds_write_b16 v44, v{r} offset:{QL+512*i+64*p}")
            A(f"ds_write_b16_d16_hi v44, v{r} offset:{QL+512*i+64*p+32}")
    A("v_mov_b32 v45, 1")
    A(f"ds_write_b32 v3, v45 offset:{QFLAG}")
    stamp(3)
    A("v_lshrrev_b32 v45, 5, v0")
    A(f"v_mul_u32_u24 v45, {QG}, v45")
    A("v_add_u32 v47, v47, v45")
    spin_head("L_gs2_poll", "L_gs2_ok")
    A("v_cmp_eq_u32 vcc, s24, v57")
    A("s_cbranch_vccnz L_gs2_ok")
    A("buffer_load_dwordx2 v[56:57], v47, s[8:11], s27 offen sc1")
    A("s_waitcnt vmcnt(0)")
    A("s_branch L_gs2_poll")
    A.label("L_gs2_ok")
    A("s_mov_b64 exec, vcc")
    A("s_nop 0")
    A("v_readfirstlane_b32 s26, v56")
    A("s_mov_b64 exec, -1")
    A("v_mov_b32 v45, s26")
    A(f"ds_write_b32 v3, v45 offset:{LFLAG}")
    stamp(10)
    A("s_cmp_ge_u32 s7, 3")
    A("s_cselect_b32 s27, 8, 0")
    A("s_lshl_b32 s28, s7, 3")
    A("s_add_u32 s27, s27, s28")
    A("s_lshl_b32 s28, s6, 8")
    A("s_add_u32 s27, s27, s28")
    A("s_add_u32 s27, s27, s31")
    A(f"s_add_u32 s27, s27, {BS_O}")
    A("v_lshlrev_b32 v46, 6, v2")
    A("v_lshlrev_b32 v9, 4, v2")
    A("s_waitcnt lgkmcnt(0)")
    A("s_barrier")
    A(f"ds_read_b128 v[60:63], v9 offset:{MAXA}")
    A(f"ds_read2st64_b32 v[64:65], v6 offset0:{LACC//256} offset1:{LACC//256+1}")
    A(f"ds_read2st64_b32 v[66:67], v6 offset0:{LACC//256+2} offset1:{LACC//256+3}")
    A("s_waitcnt lgkmcnt(0)")
    A("v_max3_f32 v60, v60, v61, v62")
    A("v_max_f32 v60, v60, v63")
    A("v_add_f32 v64, v64, v65")
    A("v_add_f32 v66, v66, v67")
    A("v_add_f32 v61, v64, v66")
    A("v_min_u32 v60, -2, v60")
    A("v_min_u32 v61, -2, v61")
    A("s_mov_b32 exec_lo, 0x00010001")
    A("s_mov_b32 exec_hi, 0x00010001")
    lstore("buffer_store_dwordx2 v[60:61], v46, s[8:11], s27 offen")
    A("s_mov_b64 exec, -1")
    stamp(4)
    A("s_cmp_ge_u32 s7, 4")
    A("s_cbranch_scc1 L_final")
    A(f"s_mov_b32 s29, {H2}")
    A("buffer_load_ushort v101, v104, s[12:15], s19 offen")
    A("buffer_load_ushort v102, v104, s[12:15], s19 offen offset:32")
    A("buffer_load_dword v40, v6, s[8:11], s29 offen sc1")
    A("s_lshl_b32 s27, s17, 13")
    A(f"s_add_u32 s27, s27, {CR}")
    A("s_barrier")
    A("s_barrier")
    stamp(5)
    spin_head("L_gf_poll", "L_gf_ok")
    A("s_waitcnt vmcnt(0)")
    A("v_cmp_ne_u32 vcc, s24, v40")
    A("s_cbranch_vccz L_gf_ok")
    A("buffer_load_dword v40, v6, s[8:11], s29 offen sc1")
    A("s_branch L_gf_poll")
    A.label("L_gf_ok")
    A("v_lshlrev_b32 v101, 16, v101")
    A("v_lshlrev_b32 v102, 16, v102")
    stamp(6)
    A("s_barrier")
    for k in range(4): A(f"ds_read_b128 v[{12+4*k}:{15+4*k}], v5 offset:{CACC+1024*k}")
    A("s_waitcnt lgkmcnt(0)")
    for i in range(4): A(f"v_pk_add_f32 v[{12+2*i}:{13+2*i}], v[{12+2*i}:{13+2*i}], v[{20+2*i}:{21+2*i}]")
    for i in range(2): A(f"v_pk_add_f32 v[{12+2*i}:{13+2*i}], v[{12+2*i}:{13+2*i}], v[{16+2*i}:{17+2*i}]")
    for i in range(4): A(f"v_min_u32 v{12+i}, -2, v{12+i}")
    A("buffer_store_dwordx4 v[12:15], v100, s[8:11], 0 offen sc1")
    stamp(7)
    spin_head("L_c_poll", "L_c_ok")
    for i in range(8):
        A(f"buffer_load_dwordx4 v[{16+4*i}:{19+4*i}], v{5 if i < 4 else 7}, s[8:11], s27 offen offset:{(i&3)*1024} sc1")
    A("s_waitcnt vmcnt(0)")
    max_tree(48, range(16, 32))
    max_tree(49, range(32, 48))
    A("v_max_u32 v48, v48, v49")
    A("v_cmp_eq_u32 vcc, -1, v48")
    A("s_cbranch_vccnz L_c_poll")
    A.label("L_c_ok")
    stamp(8)
    for i in range(8): A(f"v_pk_add_f32 v[{16+2*i}:{17+2*i}], v[{16+2*i}:{17+2*i}], v[{32+2*i}:{33+2*i}]")
    for i in range(4): A(f"v_pk_add_f32 v[{16+2*i}:{17+2*i}], v[{16+2*i}:{17+2*i}], v[{24+2*i}:{25+2*i}]")
    for i in range(2): A(f"v_pk_add_f32 v[{16+2*i}:{17+2*i}], v[{16+2*i}:{17+2*i}], v[{20+2*i}:{21+2*i}]")
    A("v_permlane32_swap_b32 v16, v18")
    A("v_permlane32_swap_b32 v17, v19")
    A("v_add_f32 v16, v16, v18")
    A("v_add_f32 v17, v17, v19")
    A("v_cvt_pk_bf16_f32 v16, v16, v17")
    A("v_and_b32 v17, s23, v16")
    A("v_lshlrev_b32 v16, 16, v16")
    A("v_add_f32 v16, v16, v101")
    A("v_add_f32 v17, v17, v102")
    A("v_cvt_pk_bf16_f32 v16, v16, v17")
    A("v_min_u32 v16, -2, v16")
    lstore("buffer_store_dword v16, v103, s[8:11], s22 offen")
    stamp(9)
    end()
    A.label("L_final")
    A("s_barrier")
    srd(12, P_OUT, 0x1000)
    A("s_sub_u32 s20, s7, 4")
    A("v_and_b32 v8, 7, v0")
    A("s_lshl_b32 s27, s20, 3")
    A("v_add_u32 v8, s27, v8")
    A("v_lshrrev_b32 v9, 5, v0")
    A("v_lshlrev_b32 v9, 6, v9")
    A("v_lshl_add_u32 v9, v8, 2, v9")
    A("s_lshl_b32 s27, s6, 10")
    A("s_lshl_b32 s28, s4, 7")
    A("s_add_u32 s21, s27, s28")
    A("s_add_u32 s27, s21, s31")
    A(f"s_add_u32 s27, s27, {HR_O}")
    A("v_lshlrev_b32 v10, 5, v2")
    A("v_lshl_add_u32 v10, v8, 1, v10")
    A("v_and_b32 v11, 1, v2")
    A("v_lshlrev_b32 v11, 4, v11")
    A("s_lshl_b32 s28, s4, 3")
    A("s_lshl_b32 s29, s6, 1")
    A("s_add_u32 s28, s28, s29")
    A("s_add_u32 s28, s28, s20")
    A(f"s_mul_i32 s29, s28, {DRS}")
    A(f"s_add_u32 s29, s29, {DR}")
    spin_head("L_fh_poll", "L_fh_ok")
    A("s_sleep 4")
    A("buffer_load_dword v12, v9, s[8:11], s27 offen sc1")
    A("s_waitcnt vmcnt(0)")
    A("v_cmp_eq_u32 vcc, -1, v12")
    A("s_cbranch_vccnz L_fh_poll")
    A.label("L_fh_ok")
    stamp(7)
    A("v_lshrrev_b32 v12, v11, v12")
    A("v_lshlrev_b32 v12, 16, v12")
    spin_head("L_d_poll", "L_d_ok")
    for i in range(7):
        A(f"buffer_load_dwordx4 v[{16+4*i}:{19+4*i}], v{5 if i < 4 else 7}, s[8:11], s29 offen offset:{(i&3)*1024} sc1")
    A("s_waitcnt vmcnt(0)")
    max_tree(48, range(16, 30))
    max_tree(49, range(30, 44))
    A("v_max_u32 v48, v48, v49")
    A("v_cmp_eq_u32 vcc, -1, v48")
    A("s_cbranch_vccnz L_d_poll")
    A.label("L_d_ok")
    stamp(8)
    for i in range(6): A(f"v_pk_add_f32 v[{16+2*i}:{17+2*i}], v[{16+2*i}:{17+2*i}], v[{32+2*i}:{33+2*i}]")
    for i in range(4): A(f"v_pk_add_f32 v[{16+2*i}:{17+2*i}], v[{16+2*i}:{17+2*i}], v[{24+2*i}:{25+2*i}]")
    for i in range(2): A(f"v_pk_add_f32 v[{16+2*i}:{17+2*i}], v[{16+2*i}:{17+2*i}], v[{20+2*i}:{21+2*i}]")
    A("v_permlane32_swap_b32 v16, v18")
    A("v_permlane32_swap_b32 v17, v19")
    A("v_add_f32 v16, v16, v18")
    A("v_add_f32 v17, v17, v19")
    A("v_permlane16_swap_b32 v16, v17")
    A("v_add_f32 v16, v16, v17")
    A("v_add_f32_dpp v16, v16, v16 row_ror:8 row_mask:0xf bank_mask:0xf")
    A("v_cvt_pk_bf16_f32 v16, v16, v16")
    A("v_and_b32 v16, s23, v16")
    A("v_add_f32 v16, v16, v12")
    A("v_cvt_pk_bf16_f32 v16, v16, v16")
    A("s_mov_b32 exec_lo, 0x00ff00ff")
    A("s_mov_b32 exec_hi, 0x00ff00ff")
    A("buffer_store_short v16, v10, s[12:15], s21 offen")
    A("s_cmp_lg_u32 s28, 0")
    A("s_cbranch_scc1 L_final_done")
    A("s_mov_b64 exec, 1")
    A("v_mov_b32 v17, s24")
    A("buffer_store_dword v17, v3, s[8:11], 0 offen sc1")
    A.label("L_final_done")
    A("s_mov_b64 exec, -1")
    stamp(9)
    end()

    A.label("L_ffn")
    A("s_cmp_eq_u32 s5, 31")
    A(f"s_cbranch_scc1 {EXIT}")
    A("s_setprio 0")
    A("s_mul_i32 s26, s4, 7")
    A("s_add_u32 s26, s26, s21")
    A("v_lshrrev_b32 v4, 3, v0")
    A("v_and_b32 v5, 7, v0")
    A("v_and_b32 v6, 2, v4")
    A("v_xor_b32 v5, v5, v6")
    A("v_lshlrev_b32 v5, 4, v5")
    A("v_lshl_add_u32 v4, v4, 10, v5")
    A("v_xor_b32 v5, 64, v4")
    A("s_lshl_b32 s27, s26, 15")
    A("s_lshl_b32 s28, s3, 7")
    A("s_add_u32 s27, s27, s28")
    A("s_lshl_b32 s22, s3, 12")
    A(f"s_add_u32 s22, s22, {DOWN}")
    A("v_lshrrev_b32 v6, 2, v0")
    A("v_and_b32 v7, 9, v6")
    A("v_bfe_u32 v12, v6, 1, 1")
    A("v_lshl_add_u32 v7, v12, 2, v7")
    A("v_bfe_u32 v12, v6, 2, 1")
    A("v_lshl_add_u32 v7, v12, 1, v7")
    A("v_mul_u32_u24 v6, 3584, v7")
    A("v_and_b32 v7, 3, v0")
    A("v_lshl_add_u32 v6, v7, 4, v6")
    A("v_xor_b32 v7, 32, v6")
    A(f"s_mul_i32 s28, s3, {128*3584}")
    A("s_lshl_b32 s29, s26, 6")
    A("s_add_u32 s28, s28, s29")
    A("s_lshl_b32 s23, s3, 13")
    A(f"s_add_u32 s23, s23, {GATE}")
    srd(12, P_WG, 512*3584)
    srd(16, P_WU, 512*3584)
    srd(56, P_WD, 1792*1024)
    spin_head("L_f1_spin", "L_f1_go")
    A("s_sleep 4")
    A(f"ds_read_b64 v[12:13], v3 offset:{QFLAG}")
    A("s_waitcnt lgkmcnt(0)")
    A("v_add_u32 v12, v12, v13")
    A("v_readfirstlane_b32 s29, v12")
    A("s_cmp_lt_u32 s29, 5")
    A("s_cbranch_scc1 L_f1_spin")
    A.label("L_f1_go")
    stamp(7)
    A("s_cmp_gt_u32 s3, 3")
    A("s_cbranch_scc1 L_f_dn")
    A("s_mov_b32 s29, s28")
    A("s_mov_b32 s21, s23")
    for m in range(2):
        for i in range(8):
            A("s_mov_b32 m0, s21")
            A("s_add_u32 s21, s21, 1024")
            A(f"buffer_load_dwordx4 v{6+(i&1)}, s[{12+4*m}:{15+4*m}], s29 offen {o['wf']} lds")
            A(f"s_add_u32 s29, s29, {16*3584}")
        if m == 0:
            A("s_mov_b32 s29, s28")
            A("s_add_u32 s21, s23, 32768")
    A.label("L_f_dn")
    A("s_mov_b32 s21, s22")
    for i in range(4):
        A("s_mov_b32 m0, s21")
        A("s_add_u32 s21, s21, 1024")
        A(f"buffer_load_dwordx4 v{4+(i&1)}, s[56:59], s27 offen {o['wf']} lds")
        A("s_add_u32 s27, s27, 8192")
    stamp(8)
    A("v_bfe_u32 v8, v0, 2, 2")
    A("v_and_b32 v9, 3, v0")
    A("v_lshlrev_b32 v104, 10, v2")
    A("v_lshl_add_u32 v104, v8, 7, v104")
    A("v_lshl_add_u32 v104, v9, 3, v104")
    A("v_lshrrev_b32 v10, 1, v8")
    A("v_and_b32 v11, 1, v2")
    A("v_lshl_add_u32 v12, v11, 1, v10")
    A("v_lshl_add_u32 v104, v12, 5, v104")
    A("v_add_u32 v104, s22, v104")
    A("v_xor_b32 v105, 32, v104")
    A("v_xor_b32 v106, 64, v104")
    A("v_xor_b32 v107, 0x60, v104")
    A("v_and_b32 v13, 1, v8")
    A("v_mul_u32_u24 v108, 1056, v13")
    A("v_lshl_add_u32 v108, v12, 6, v108")
    A("v_lshrrev_b32 v13, 1, v2")
    A("v_lshl_add_u32 v108, v13, 9, v108")
    A("v_lshl_add_u32 v108, v9, 3, v108")
    A("v_add_u32 v108, s23, v108")
    A("v_xor_b32 v109, 32, v108")
    A("v_lshlrev_b32 v110, 8, v13")
    A("v_lshl_add_u32 v110, v8, 6, v110")
    A("v_lshl_add_u32 v110, v11, 5, v110")
    A("v_lshl_add_u32 v110, v9, 3, v110")
    A(f"v_add_u32 v110, {GACC}, v110")
    A("v_lshlrev_b32 v111, 3, v8")
    A("s_lshl_b32 s27, s3, 10")
    A("v_lshl_add_u32 v112, v0, 2, s27")
    for i in range(4): A(f"v_cmp_eq_u32 s[{32+2*i}:{33+2*i}], {i}, v9")
    A("v_lshrrev_b32 v113, 3, v0")
    A(f"v_mul_u32_u24 v113, {DRS}, v113")
    A("v_and_b32 v13, 7, v0")
    A("v_lshl_add_u32 v113, v13, 4, v113")
    A(f"s_mul_i32 s28, s3, {8*DRS}")
    A("s_lshl_b32 s29, s26, 7")
    A("s_add_u32 s28, s28, s29")
    A(f"s_add_u32 s28, s28, {DR}")
    A("s_lshl_b32 s31, s4, 15")
    A(f"s_add_u32 s31, s31, {GL+HR_O}")
    A("s_mov_b32 s23, 0xffff0000")
    A(f"s_mov_b32 s21, {LOG2E | 0x80000000:#x}")
    DF = 88
    GB = 24
    ACC = [4, 116, 120, 124]
    def down_reads():
        for tau in range(4):
            r = DF + 4*tau
            A(f"ds_read_b64_tr_b16 v[{r}:{r+1}], v{104+tau}")
            A(f"ds_read_b64_tr_b16 v[{r+2}:{r+3}], v{104+tau} offset:512")
    def acc_write(base):
        A(f"ds_write2st64_b32 v112, v{ACC[0]}, v{ACC[1]} offset0:{base//256} offset1:{base//256+1}")
        A(f"ds_write2st64_b32 v112, v{ACC[2]}, v{ACC[3]} offset0:{base//256+2} offset1:{base//256+3}")
    def sum4(dst, off):
        for k in range(4):
            A(f"ds_read2st64_b64 v[{8+4*k}:{11+4*k}], v110 offset0:{(off+1024*k)//512} offset1:{(off+1024*k)//512+1}")
    A("s_cmp_gt_u32 s3, 3")
    A("s_cbranch_scc1 L_f_stat")
    A("v_lshlrev_b32 v114, 10, v8")
    A("v_lshl_add_u32 v114, v2, 4, v114")
    A("s_lshl_b32 s27, s3, 8")
    A("s_add_u32 s27, s27, s31")
    for i in range(4): A(f"v_mov_b32 v{8+i}, 0x3f803f80")
    for m in range(2):
        A(f"s_waitcnt vmcnt({12 - 8*m})")
        for ks in range(4):
            for t2 in range(2):
                r = GB + 32*m + 8*ks + 4*t2
                A(f"ds_read_b64_tr_b16 v[{r}:{r+1}], v{108+t2} offset:{m*32768+ks*2048}")
                A(f"ds_read_b64_tr_b16 v[{r+2}:{r+3}], v{108+t2} offset:{m*32768+ks*2048+256}")
    A("s_waitcnt lgkmcnt(0)")
    for ks in range(4):
        for j in range(4):
            m, t2 = j >> 1, j & 1
            r = GB + 32*m + 8*ks + 4*t2
            d = ACC[j]
            A(f"v_mfma_f32_16x16x32_bf16 v[{d}:{d+3}], v[8:11], v[{r}:{r+3}], {'0' if ks == 0 else f'v[{d}:{d+3}]'}")
    acc_write(CSUM)
    A("s_branch L_f_cs")
    A.label("L_f_stat")
    A("v_lshlrev_b32 v114, 4, v0")
    A("s_sub_u32 s29, s3, 4")
    A("s_lshl_b32 s27, s29, 10")
    A("s_add_u32 s27, s27, s31")
    A("s_lshl_b32 s29, s29, 3")
    A("v_mov_b32 v115, s29")
    A.label("L_f_cs")
    A("s_waitcnt vmcnt(0)")
    stamp(9)
    down_reads()
    A("s_waitcnt lgkmcnt(0)")
    A("s_barrier")
    sum4(0, CSUM - GACC)
    A("s_waitcnt lgkmcnt(0)")
    for i in range(4): A(f"v_pk_add_f32 v[{8+2*i}:{9+2*i}], v[{8+2*i}:{9+2*i}], v[{16+2*i}:{17+2*i}]")
    for i in range(2): A(f"v_pk_add_f32 v[{104+2*i}:{105+2*i}], v[{8+2*i}:{9+2*i}], v[{12+2*i}:{13+2*i}]")
    A("s_setprio 3")
    stamp(10)
    A("s_cmp_gt_u32 s3, 3")
    A("s_cbranch_scc1 L_f_stat2")
    spin_head("L_g_poll", "L_g_ok")
    for ks in range(4):
        A(f"buffer_load_dwordx4 v[{8+4*ks}:{11+4*ks}], v114, s[8:11], s27 offen offset:{64*ks} sc1")
    A("s_waitcnt vmcnt(0)")
    max_tree(115, range(8, 24))
    A("v_cmp_eq_u32 vcc, -1, v115")
    A("s_cbranch_vccnz L_g_poll")
    A.label("L_g_ok")
    stamp(11)
    for ks in range(4):
        for j in range(4):
            m, t2 = j >> 1, j & 1
            r = GB + 32*m + 8*ks + 4*t2
            d = ACC[j]
            A(f"v_mfma_f32_16x16x32_bf16 v[{d}:{d+3}], v[{8+4*ks}:{11+4*ks}], v[{r}:{r+3}], {'0' if ks == 0 else f'v[{d}:{d+3}]'}")
    acc_write(GACC)
    A("s_branch L_f_join")
    A.label("L_f_stat2")
    spin_head("L_s_poll", "L_s_ok")
    A("buffer_load_dwordx4 v[8:11], v114, s[8:11], s27 offen sc1")
    A("s_waitcnt vmcnt(0)")
    max_tree(12, range(8, 12))
    A("v_cmp_eq_u32 vcc, -1, v12")
    A("s_cbranch_vccnz L_s_poll")
    A.label("L_s_ok")
    stamp(11)
    for i in range(4):
        A(f"v_lshlrev_b32 v{12+2*i}, 16, v{8+i}")
        A(f"v_and_b32 v{13+2*i}, s23, v{8+i}")
    A("v_pk_add_f32 v[20:21], v[12:13], v[14:15]")
    A("v_pk_mul_f32 v[24:25], v[12:13], v[12:13]")
    A("v_pk_add_f32 v[22:23], v[16:17], v[18:19]")
    A("v_pk_fma_f32 v[24:25], v[14:15], v[14:15], v[24:25]")
    A("v_pk_add_f32 v[20:21], v[20:21], v[22:23]")
    A("v_pk_fma_f32 v[24:25], v[16:17], v[16:17], v[24:25]")
    A("v_add_f32 v20, v20, v21")
    A("v_pk_fma_f32 v[24:25], v[18:19], v[18:19], v[24:25]")
    A("v_add_f32 v21, v24, v25")
    A("v_permlane32_swap_b32 v20, v21")
    A("v_add_f32 v20, v20, v21")
    A("v_mov_b32 v21, v20")
    A("v_permlane16_swap_b32 v20, v21")
    A("v_add_f32 v20, v20, v21")
    rowsum(20)
    A("v_mul_f32 v20, 0x3b000000, v20")
    A("v_mov_b32 v21, v20")
    A("v_permlane32_swap_b32 v20, v21")
    A("v_fma_f32 v21, -v20, v20, v21")
    A("v_max_f32 v21, 0, v21")
    A(f"v_add_f32 v21, {EPS:#x}, v21")
    A("v_rsq_f32 v21, v21")
    A(f"ds_write_b64 v115, v[20:21] offset:{STAT}")
    A.label("L_f_join")
    A("s_waitcnt lgkmcnt(0)")
    A("s_barrier")
    stamp(12)
    sum4(0, 0)
    A(f"ds_read_b64 v[24:25], v111 offset:{STAT}")
    A("s_waitcnt lgkmcnt(0)")
    for i in range(4): A(f"v_pk_add_f32 v[{8+2*i}:{9+2*i}], v[{8+2*i}:{9+2*i}], v[{16+2*i}:{17+2*i}]")
    for i in range(2): A(f"v_pk_add_f32 v[{8+2*i}:{9+2*i}], v[{8+2*i}:{9+2*i}], v[{12+2*i}:{13+2*i}]")
    for i in range(4): A(f"v_fma_f32 v{8+i}, -v24, v{104+i}, v{8+i}")
    for i in range(4): A(f"v_mul_f32 v{8+i}, v25, v{8+i}")
    A("v_cvt_pk_bf16_f32 v12, v8, v9")
    A("v_cvt_pk_bf16_f32 v13, v10, v11")
    A("v_lshlrev_b32 v8, 16, v12")
    A("v_and_b32 v9, s23, v12")
    A("v_mul_f32 v8, s21, v8")
    A("v_mul_f32 v9, s21, v9")
    A("v_exp_f32 v8, v8")
    A("v_exp_f32 v9, v9")
    A("v_lshlrev_b32 v10, 16, v13")
    A("v_and_b32 v11, s23, v13")
    A("v_add_f32 v8, 1.0, v8")
    A("v_add_f32 v9, 1.0, v9")
    A("v_rcp_f32 v8, v8")
    A("v_rcp_f32 v9, v9")
    A("v_cvt_pk_bf16_f32 v12, v8, v9")
    A("v_lshlrev_b32 v8, 16, v12")
    A("v_and_b32 v9, s23, v12")
    A("v_mul_f32 v8, v8, v10")
    A("v_mul_f32 v9, v9, v11")
    A("v_cvt_pk_bf16_f32 v12, v8, v9")
    for i in range(4): A(f"v_cndmask_b32 v{16+i}, 0, v12, s[{32+2*i}:{33+2*i}]")
    for tau in range(4):
        A(f"v_mfma_f32_16x16x32_bf16 v[{24+4*tau}:{27+4*tau}], v[16:19], v[{DF+4*tau}:{DF+4*tau+3}], 0")
    for tau in range(4):
        d = 24 + 4*tau
        A(f"v_pk_add_f32 v[{d}:{d+1}], v[{d}:{d+1}], v[{d+2}:{d+3}]")
        A(f"v_add_f32 v{d}, v{d}, v{d+1}")
        A(f"v_min_u32 v{20+tau}, -2, v{d}")
    A("buffer_store_dwordx4 v[20:23], v113, s[8:11], s28 offen sc1")
    stamp(13)
    if stamps:
        A.label("L_endstamp")
        A("s_mov_b64 exec, -1")
        stamp(15)
        A("s_waitcnt lgkmcnt(0)")
        for i in range(6): A("s_barrier")
        if o.get("probe"):
            att, wlo, whi, st, k = o["probe"]
            A("s_mov_b32 s27, 0")
            A("s_cmp_lt_u32 s5, 24")
            A(f"s_cbranch_scc{0 if att else 1} L_pr_go")
            A(f"s_cmp_lt_u32 s3, {wlo}")
            A("s_cbranch_scc1 L_pr_go")
            A(f"s_cmp_gt_u32 s3, {whi}")
            A("s_cbranch_scc1 L_pr_go")
            A(f"s_cmp_eq_u32 s{64+2*st}, 0")
            A("s_cbranch_scc1 L_pr_go")
            A(f"s_sub_u32 s27, s{64+2*st}, s64")
            A(f"s_mul_i32 s27, s27, {k}")
            A.label("L_pr_go")
            A("s_add_u32 s27, s27, 3000")
            A.label("L_pr_spin")
            A("s_sleep 4")
            A("s_memrealtime s[28:29]")
            A("s_waitcnt lgkmcnt(0)")
            A("s_sub_u32 s28, s28, s64")
            A("s_cmp_lt_u32 s28, s27")
            A("s_cbranch_scc1 L_pr_spin")
        else:
            A("v_mov_b32 v8, 0")
            for i in range(16): A(f"v_writelane_b32 v8, s{64+2*i}, {i}")
            A("s_lshl_b32 s27, s2, 4")
            A("s_add_u32 s27, s27, s3")
            A("s_lshl_b32 s27, s27, 6")
            A(f"s_add_u32 s27, s27, {STAMPS}")
            A("v_lshlrev_b32 v9, 2, v0")
            A("s_mov_b64 exec, 0xffff")
            A("buffer_store_dword v8, v9, s[8:11], s27 offen")
    A.label("L_exit")
    A("s_endpgm")
    A.label("L_code_end")
    A.raw('.section .rodata,"a"\n.p2align 6')
    A.raw(f".amdhsa_kernel {KNAME}")
    A.raw("  .amdhsa_next_free_vgpr 128\n  .amdhsa_next_free_sgpr 96\n  .amdhsa_accum_offset 128")
    A.raw("  .amdhsa_group_segment_fixed_size 0\n  .amdhsa_kernarg_size 96\n  .amdhsa_user_sgpr_count 2\n  .amdhsa_user_sgpr_kernarg_segment_ptr 1\n  .amdhsa_system_sgpr_workgroup_id_x 1\n  .amdhsa_float_denorm_mode_32 3")
    A.raw(".end_amdhsa_kernel")
    return A.text()

if __name__ == "__main__":
    out = sys.argv[1] if len(sys.argv) > 1 else "sequential_preLN__sliding_block_cached__glu_gated_glu__decode.s"
    stamps = len(sys.argv) > 2 and sys.argv[2] == "1"
    opts = eval(sys.argv[3]) if len(sys.argv) > 3 else None
    open(out, "w").write(gen(stamps, opts))
```
